```python
import torch

def _softmax(x, axis=-1):
    return torch.softmax(x, dim=axis)
def _gelu(x):
    return torch.nn.functional.gelu(x, approximate="tanh")
def _silu(x):
    return torch.nn.functional.silu(x)
def _sigmoid(x):
    return torch.sigmoid(x)
def _layernorm(x, axis=-1, eps=1e-5):
    m = x.mean(dim=axis, keepdim=True)
    v = x.var(dim=axis, keepdim=True, unbiased=False)
    return (x - m) / torch.sqrt(v + eps)
def _scatter_add(tgt, idx, src, axis=0):
    return tgt.clone().index_add_(axis, idx, src)
def _segment_sum(src, seg, n):
    out = torch.zeros((n,) + src.shape[1:], dtype=src.dtype)
    return out.index_add_(0, seg, src)
def _pad(x, pw):
    flat = tuple(v for pair in reversed(pw) for v in pair)
    return torch.nn.functional.pad(x, flat)

kernel_name = 'standalone__deep_cross_wide_deep__recsys'

def setup_inputs():

    _w = (lambda a: (lambda t: t.to(torch.bfloat16) if t.is_floating_point() else t)(torch.as_tensor(a)))
    B, F, D = 4096, 26, 128
    V, Nd = min(1000, 100000), 13
    Din = F * D
    H = 4 * D
    return {
        "idx": _w((lambda lo, hi, *s: torch.randint(lo, hi, s))(0, V, B, F).to(torch.int64)),
        "table": _w((lambda *s: torch.randn(*s, dtype=torch.bfloat16) * 1.6)(V, D) * 0.05),
        "x_wide": _w((lambda *s: torch.randn(*s, dtype=torch.bfloat16) * 1.6)(B, Nd)),
        "w_wide": _w((lambda *s: torch.randn(*s, dtype=torch.bfloat16) * 1.6)(Nd) * 0.05),
        "b_wide": _w((lambda *s: torch.randn(*s, dtype=torch.bfloat16) * 1.6)(1) * 0.01),
        "W1": _w((lambda *s: torch.randn(*s, dtype=torch.bfloat16) * 1.6)(Din, H) * (2.0 / Din) ** 0.5),
        "b1": _w((lambda *s: torch.randn(*s, dtype=torch.bfloat16) * 1.6)(H) * 0.01),
        "W2": _w((lambda *s: torch.randn(*s, dtype=torch.bfloat16) * 1.6)(H) * (1.0 / H) ** 0.5),
        "b2": _w((lambda *s: torch.randn(*s, dtype=torch.bfloat16) * 1.6)(1) * 0.01),
    }

def reference(idx, table, x_wide, w_wide, b_wide, W1, b1, W2, b2):
    emb = table[idx]
    deep_in = emb.reshape(emb.shape[0], -1)
    h = deep_in @ W1 + b1
    h = h * (lambda x, dt: x.to(dt))(h > 0, h.dtype)
    deep_logit = h @ W2 + b2
    wide_logit = x_wide @ w_wide + b_wide
    return _sigmoid(wide_logit + deep_logit)
```

```python
import sys
KN = "standalone__deep_cross_wide_deep__recsys_kernel"
REF = "standalone__deep_cross_wide_deep__recsys.s.ref"

ODD_OFF = 0
EVEN_OFF = 65520
IDX_OFF = 131040
RED = 65520
LDS_BYTES = 163840

AD0 = 16
RAW0 = 72
F0 = 136
OWN0 = 168
W2F = 200
W2R = 216
XR = 232
T0 = 240
vL, vG16, vG16x, vW1a, vW1b, vSel, vSelH = 1, 2, 3, 4, 5, 6, 7
vD = [8, 9, 10, 11]
vRW = [12, 13, 14]
vRR0, vRR1 = 15, 244
vWide, vFlag, vAt, vPf, vClaim = 245, 246, 247, 248, 249
vT1, vT2, vT3, vT4 = 250, 251, 252, 253
vZ0 = 254
EA0 = 96
sIDX, sTAB, sW1 = 28, 32, 36
sX_, sWW, sBW, sB1, sW2, sB2, sOUT, sDBG, sWS = 8, 10, 12, 16, 18, 20, 22, 24, 26
sW, sNS, sMT, sK, sXO, sDM0, sDSO, s65, sT1, sT2, sT3, sRole, sD2 = 3, 4, 5, 6, 7, 40, 41, 42, 43, 44, 45, 46, 47
sWWv = 64
ST0 = 80

def AD(f, m):
    b = AD0 + 14 * (m >> 1); o = m & 1
    if f < 4: return b + 4 * o + f
    if f < 6: return b + 8 + 2 * o + (f - 4)
    return b + 12 + o
def RAW(slot, kd): return RAW0 + 16 * slot + 4 * kd
def F(b, t): return F0 + 16 * b + 4 * t
def OWN(u, t): return OWN0 + 16 * u + 4 * t
def vr(b, n=4): return f"v[{b}:{b+n-1}]"
def ar(b, n=4): return f"a[{b}:{b+n-1}]"
def ACC(m, t):
    return ar((m * 4 + t) * 4) if m < 6 else vr(OWN(m - 6, t))
def E(m): return ar(EA0 + 4 * m)

class G:
    def __init__(s, opt):
        s.o = []; s.vm = 0; s.tags = {}; s.opt = opt; s.nlab = 0
    def e(s, x): s.o.append("  " + x)
    def lab(s, x): s.o.append(x + ":")
    def vmem(s, x, tag=None):
        s.e(x); s.vm += 1
        if tag is not None: s.tags[tag] = s.vm
    def mark(s, tag): s.tags[tag] = s.vm
    def vmw(s, tag):
        n = s.vm - s.tags[tag]
        return min(n, 63)
    def waitvm(s, tag): s.e(f"s_waitcnt vmcnt({s.vmw(tag)})")
    def stamp(s, i):
        if s.opt.get("stamp"):
            s.e(f"s_memtime s[{ST0+2*i}:{ST0+2*i+1}]"); s.e("s_waitcnt lgkmcnt(0)")

def stepinfo(s):
    h, r = divmod(s, 13)
    if r < 6: return (r, 2 * h)
    if r == 6: return (6, 2 * h)
    return (r - 7, 2 * h + 1)

def w1_soff(g, s):
    f, c = stepinfo(s)
    if f < 6: return f"s_mov_b32 s{sK}, {f*131072 + c*32768}"
    return f"s_add_u32 s{sK}, s{sXO}, {c*32768}"
def w1_load(g, s, kd):
    slot = s % 4
    r = RAW(slot, kd)
    g.vmem(f"buffer_load_dwordx4 {vr(r)}, v{vW1a if kd < 2 else vW1b}, s[{sW1}:{sW1+3}], s{sK} offen" + (" offset:2048" if kd & 1 else ""), tag=("raw", s, kd))
def e_read(g, s, m):
    f, c = stepinfo(s)
    off = 0 if f == 6 else (EVEN_OFF if c % 2 == 0 else ODD_OFF)
    g.e(f"ds_read_b128 {E(m)}, v{AD(f, m)}" + (f" offset:{off}" if off else ""))
def xf_mov(g, s, kd, j):
    g.e(f"v_mov_b32_dpp v{T0 + (j & 3)}, v{RAW(s % 4, kd) + j} row_ror:8 row_mask:0xf bank_mask:0xf")
def xf_perm(g, s, kd, j):
    g.e(f"v_perm_b32 v{F(s & 1, j) + kd}, v{T0 + (j & 3)}, v{RAW(s % 4, kd) + j}, v{vSel}")
def dma_setup(g, c, q):
    buf = EVEN_OFF if c % 2 == 0 else ODD_OFF
    g.e(f"s_add_u32 m0, s{sDM0}, {buf + q*4160}")
    g.e(f"s_add_u32 s{sD2}, s{sDSO}, {c*64 + q*16384}")
def dma(g, c, q, j):
    g.vmem(f"buffer_load_dwordx4 v{vD[j]}, s[{sTAB}:{sTAB+3}], s{sD2} offen" + (f" offset:{j*1040}" if j else "") + " lds", tag=("dma", c))

def gen(opt):
    g = G(opt); e = g.e
    e("s_cmp_ge_u32 s2, 256")
    e("s_cbranch_scc1 L_END")
    e(f"s_load_dwordx2 s[{sIDX}:{sIDX+1}], s[0:1], 0")
    e(f"s_load_dwordx2 s[{sTAB}:{sTAB+1}], s[0:1], 8")
    e(f"s_load_dwordx2 s[{sW1}:{sW1+1}], s[0:1], 40")
    e(f"s_load_dwordx4 s[16:19], s[0:1], 48")
    e(f"s_load_dwordx4 s[8:11], s[0:1], 16")
    e(f"s_load_dwordx2 s[12:13], s[0:1], 32")
    e(f"s_load_dwordx8 s[20:27], s[0:1], 64")
    if opt.get("stamp"):
        e(f"s_memrealtime s[{ST0+12}:{ST0+13}]")
        e(f"s_memtime s[{ST0}:{ST0+1}]")
        for i in range(1, 6): e(f"s_mov_b64 s[{ST0+2*i}:{ST0+2*i+1}], 0")
    e(f"v_lshrrev_b32 v{vT1}, 6, v0")
    e(f"v_and_b32 v{vL}, 63, v0")
    e(f"v_readfirstlane_b32 s{sW}, v{vT1}")
    e(f"s_and_b32 s{sNS}, s2, 7")
    e(f"s_lshr_b32 s{sMT}, s2, 3")
    e(f"s_mov_b32 s{sIDX+2}, 425984")
    e(f"s_mov_b32 s{sIDX+3}, 0x00020000")
    e(f"s_mov_b32 s{sTAB+2}, 256000")
    e(f"s_mov_b32 s{sTAB+3}, 0x00020000")
    e(f"s_mov_b32 s{sW1+2}, 3407872")
    e(f"s_mov_b32 s{sW1+3}, 0x00020000")
    e(f"s_mul_i32 s{sT1}, s{sW}, 3072")
    e(f"s_add_u32 m0, s{sT1}, {IDX_OFF}")
    e(f"s_mul_i32 s{sT2}, s{sMT}, 13312")
    e(f"s_add_u32 s{sT2}, s{sT2}, s{sT1}")
    e(f"v_lshlrev_b32 v{vT2}, 4, v{vL}")
    e(f"v_and_b32 v{vG16}, 48, v{vL}")
    e(f"v_lshlrev_b32 v{vW1a}, 9, v{vG16}")
    e(f"v_and_b32 v{vT1}, 8, v{vL}")
    e(f"v_lshl_add_u32 v{vW1a}, v{vT1}, 7, v{vW1a}")
    e(f"v_and_b32 v{vT3}, 7, v{vL}")
    e(f"v_lshl_add_u32 v{vW1a}, v{vT3}, 4, v{vW1a}")
    e(f"s_mul_i32 s{sT1}, s{sW}, {6*131072}")
    e(f"s_lshl_b32 s{sT3}, s{sNS}, 7")
    e(f"s_add_u32 s{sT1}, s{sT1}, s{sT3}")
    e(f"v_add_u32 v{vW1a}, s{sT1}, v{vW1a}")
    e(f"v_add_u32 v{vW1b}, 4096, v{vW1a}")
    e(f"v_lshrrev_b32 v{vT3}, 2, v{vL}")
    e(f"v_lshlrev_b32 v{vD[0]}, 8, v{vT3}")
    e(f"v_and_b32 v{vT3}, 3, v{vL}")
    e(f"v_lshl_add_u32 v{vD[0]}, v{vT3}, 4, v{vD[0]}")
    for j in range(1, 4): e(f"v_add_u32 v{vD[j]}, {j*3056}, v{vD[0]}")
    e(f"s_lshl_b32 s{sT1}, s{sW}, 4")
    e(f"s_min_u32 s{sT1}, s{sT1}, 47")
    e(f"s_mul_i32 s{sDM0}, s{sT1}, 1040")
    e(f"s_lshl_b32 s{sDSO}, s{sT1}, 12")
    e(f"v_and_b32 v{vT3}, 16, v{vL}")
    e(f"v_lshlrev_b32 v{vT3}, 2, v{vT3}")
    e(f"v_add_u32 v{vT3}, s{sT3}, v{vT3}")
    e(f"s_mov_b32 s{sK}, 0")
    e("s_waitcnt lgkmcnt(0)")
    for j in range(4):
        g.vmem(f"buffer_load_dwordx4 v{vT2}, s[{sIDX}:{sIDX+3}], s{sT2} offen" + (f" offset:{j*1024}" if j else "") + " lds", tag="idx")
    for kd in range(4): w1_load(g, 0, kd)
    for q in range(4):
        dma_setup(g, 0, q)
        for j in range(4): dma(g, 0, q, j)
    for r in range(4):
        g.vmem(f"global_load_dwordx4 {vr(F(1, r))}, v{vT3}, s[{sB1}:{sB1+1}]" + (f" offset:{16*r}" if r else ""), tag="b1")
    e(w1_soff(g, 1))
    for kd in range(4): w1_load(g, 1, kd)
    e(f"v_mov_b32 v{vSel}, 0x05040100")
    e(f"v_mov_b32 v{vT4}, 0x03020706")
    e(f"v_cmp_ne_u32 vcc, 0, v{vT1}")
    e(f"s_mov_b32 s{s65}, 65")
    e(f"s_cmp_lt_u32 s{sW}, 2")
    e(f"v_cndmask_b32 v{vSel}, v{vSel}, v{vT4}, vcc")
    e(f"s_cselect_b32 s{sT1}, {EVEN_OFF}, {ODD_OFF}")
    e(f"v_add_u32 v{vG16x}, s{sT1}, v{vG16}")
    e(f"v_mov_b32 v{vSelH}, 0x01000c0c")
    e(f"v_mov_b32 v{vT4}, 0x03020c0c")
    e(f"v_cmp_lt_u32 vcc, 31, v{vL}")
    e(f"s_and_b32 s{sT1}, s{sW}, 1")
    e(f"s_add_u32 s{sT1}, s{sT1}, 24")
    e(f"v_cndmask_b32 v{vSelH}, v{vSelH}, v{vT4}, vcc")
    e(f"s_mul_i32 s{sXO}, s{sW}, 6")
    e(f"s_sub_u32 s{sXO}, s{sT1}, s{sXO}")
    e(f"s_lshl_b32 s{sT3}, s{sXO}, 2")
    e(f"s_lshl_b32 s{sXO}, s{sXO}, 17")
    e(f"s_lshr_b32 s{sT1}, s{sW}, 1")
    e(f"s_lshl_b32 s{sT1}, s{sT1}, 15")
    e(f"s_add_u32 s{sXO}, s{sXO}, s{sT1}")
    e(f"v_and_b32 v{vT1}, 15, v{vL}")
    e(f"v_mul_u32_u24 v{vT1}, 104, v{vT1}")
    e(f"s_mul_i32 s{sT1}, s{sW}, 24")
    e(f"s_add_u32 s{sT1}, s{sT1}, {IDX_OFF}")
    e(f"v_add_u32 v{vT1}, s{sT1}, v{vT1}")
    for a in range(4):
        e(f"s_add_u32 s{sT1}, s{sW}, {a+1}")
        e(f"s_and_b32 s{sT1}, s{sT1}, 3")
        e(f"s_mul_i32 s{sT2}, s{sT1}, 3328")
        e(f"v_add_u32 v{T0+a}, s{sT2}, v{vT1}")
        if a < 3:
            e(f"s_lshl_b32 s{sT1}, s{sT1}, 13")
            e(f"s_add_u32 s{sT1}, s{sT1}, {RED + a*32768}")
            e(f"v_add_u32 v{vRW[a]}, s{sT1}, v{vT2}")
    e(f"s_lshl_b32 s{sT1}, s{sW}, 13")
    e(f"s_add_u32 s{sT1}, s{sT1}, {RED}")
    e(f"v_add_u32 v{vRR0}, s{sT1}, v{vT2}")
    e(f"v_add_u32 v{vRR1}, 0x10000, v{vRR0}")
    for a in range(4): e(f"v_add_u32 v{XR+a}, s{sT3}, v{T0+a}")
    g.waitvm("idx")
    e("s_barrier")
    g.stamp(1)
    for a in range(4):
        b = AD0 + 14 * a
        e(f"ds_read2_b64 {vr(b)}, v{T0+a} offset0:0 offset1:1")
        e(f"ds_read2_b64 {vr(b+4)}, v{T0+a} offset0:208 offset1:209")
        e(f"ds_read2_b64 {vr(b+8)}, v{T0+a} offset0:2 offset1:210")
        e(f"ds_read_b32 v{b+12}, v{XR+a}")
        e(f"ds_read_b32 v{b+13}, v{XR+a} offset:1664")
    for s in (2, 3):
        e(w1_soff(g, s))
        for kd in range(4): w1_load(g, s, kd)
    for r in range(4):
        g.vmem(f"global_load_dwordx4 {vr(W2R+4*r)}, v{vT3}, s[{sW2}:{sW2+1}]" + (f" offset:{16*r}" if r else ""), tag="w2")
    if opt.get("pf", 1):
        e(f"v_min_u32 v{vT4}, 25, v{vL}")
        e(f"v_lshlrev_b32 v{vT4}, 10, v{vT4}")
        e(f"s_mul_i32 s{sT1}, s{sMT}, 104")
        e(f"s_mul_i32 s{sT2}, s{sW}, 26")
        e(f"s_add_u32 s{sT1}, s{sT1}, s{sT2}")
        e(f"s_lshl_b32 s{sT1}, s{sT1}, 10")
        e(f"s_lshl_b32 s{sT2}, s{sNS}, 7")
        e(f"s_add_u32 s{sT1}, s{sT1}, s{sT2}")
        g.vmem(f"buffer_load_dword v{vPf}, v{vT4}, s[{sW1}:{sW1+3}], s{sT1} offen")
        e(f"v_and_b32 v{vT4}, 7, v{vL}")
        e(f"v_lshlrev_b32 v{vT4}, 8, v{vT4}")
        e(f"s_lshl_b32 s{sT1}, s{sMT}, 13")
        e(f"s_lshl_b32 s{sT2}, s{sW}, 11")
        e(f"s_add_u32 s{sT1}, s{sT1}, s{sT2}")
        g.vmem(f"buffer_load_dword v{vPf}, v{vT4}, s[{sTAB}:{sTAB+3}], s{sT1} offen offset:128")
    e(f"s_lshl_b32 s{sT1}, s{sMT}, 7")
    e(f"s_lshl_b32 s{sT2}, s{sW}, 5")
    e(f"s_add_u32 s{sT1}, s{sT1}, s{sT2}")
    e(f"v_and_b32 v{vT4}, 31, v{vL}")
    e(f"v_add_u32 v{vT4}, s{sT1}, v{vT4}")
    e(f"v_lshlrev_b32 v{vAt}, 3, v{vT4}")
    e(f"v_mov_b32 v{vWide}, 0")
    e(f"v_mov_b32 v{vZ0}, 0")
    e(f"v_mov_b32 v{vZ0+1}, 0")
    e(f"s_mov_b32 s{sRole}, 0")
    e("s_waitcnt lgkmcnt(0)")
    e(f"s_cmp_lg_u32 s{sNS}, 0")
    e("s_cbranch_scc1 L_NOX")
    e(f"v_mul_u32_u24 v{vT2}, 26, v{vT4}")
    e(f"v_and_b32 v{vT2}, -4, v{vT2}")
    e(f"global_load_dwordx4 {vr(XR)}, v{vT2}, s[{sX_}:{sX_+1}]")
    e(f"global_load_dwordx3 {vr(XR+4,3)}, v{vT2}, s[{sX_}:{sX_+1}] offset:16")
    e(f"s_load_dwordx4 s[{sWWv}:{sWWv+3}], s[{sWW}:{sWW+1}], 0")
    e(f"s_load_dwordx2 s[{sWWv+4}:{sWWv+5}], s[{sWW}:{sWW+1}], 16")
    e(f"s_load_dword s{sWWv+6}, s[{sWW}:{sWW+1}], 24")
    e(f"s_load_dword s{sWWv+7}, s[{sBW}:{sBW+1}], 0")
    e(f"s_load_dword s{sWWv+8}, s[{sB2}:{sB2+1}], 0")
    e(f"s_cmp_lg_u32 s{sW}, 0")
    e("s_cbranch_scc1 L_NOX")
    e(f"s_mov_b32 s{sRole}, 1")
    e(f"s_lshl_b32 s{sT1}, s{sMT}, 2")
    e(f"v_mov_b32 v{vT2}, s{sT1}")
    e(f"v_mov_b32 v{vClaim}, 1")
    e("s_mov_b64 exec, 1")
    e(f"global_atomic_add v{vClaim}, v{vT2}, v{vClaim}, s[{sDBG}:{sDBG+1}] sc0 sc1")
    e("s_mov_b64 exec, -1")
    g.lab("L_NOX")
    g.mark("x")
    for f in range(7):
        for m in range(8):
            e(f"v_mad_u32_u24 v{AD(f,m)}, v{AD(f,m)}, s{s65}, v{vG16x if f == 6 else vG16}")
        for m in range(8):
            e(f"v_and_b32 v{AD(f,m)}, -16, v{AD(f,m)}")
    g.waitvm(("raw", 0, 3))
    for kd in range(4):
        for j in range(4): xf_mov(g, 0, kd, j)
        for j in range(4): xf_perm(g, 0, kd, j)
    g.stamp(2)
    g.waitvm(("dma", 0))
    e("s_barrier")
    for m in range(8): e_read(g, 0, m)
    e(w1_soff(g, 4))
    for kd in range(4): w1_load(g, 4, kd)
    g.waitvm("b1")
    for t in range(4):
        for r in range(4):
            e(f"v_perm_b32 v{OWN(1,t)+r}, v{F(1,r)+t}, v{F(1,r)+t}, v{vSelH}")
    e("s_waitcnt lgkmcnt(0)")
    g.stamp(3)

    dma_steps = {0: (1, 0), 1: (1, 1), 2: (1, 2), 3: (1, 3),
                 7: (2, 0), 8: (2, 1), 9: (2, 2), 10: (2, 3),
                 13: (3, 0), 14: (3, 1), 15: (3, 2), 16: (3, 3)}
    NS = 26
    for s in range(NS):
        pre = [[] for _ in range(33)]
        post = [[] for _ in range(32)]
        if s in (5, 12, 18):
            c = {5: 1, 12: 2, 18: 3}[s]
            pre[3].append(lambda c=c: g.waitvm(("dma", c)))
            pre[3].append(lambda: e("s_barrier"))
        if s in (7, 13, 22):
            pre[0].append(lambda: e("s_barrier"))
        if s > 0:
            for m in range(8):
                n = 7 if s < NS - 1 else min(15, 7 - m + 4 * max(0, m - 2))
                pre[4 * m].append(lambda n=n: e(f"s_waitcnt lgkmcnt({n})"))
        if s < NS - 1:
            for m in range(8):
                post[4 * m + 3].append(lambda m=m: e_read(g, s + 1, m))
            i = 0
            for kd in range(4):
                for j in range(4):
                    if j == 0:
                        post[i].append(lambda kd=kd: g.waitvm(("raw", s + 1, kd)))
                    post[i].append(lambda kd=kd, j=j: xf_mov(g, s + 1, kd, j)); i += 1
                    post[i].append(lambda kd=kd, j=j: xf_perm(g, s + 1, kd, j)); i += 1
                if s + 5 < NS:
                    pos = min(i, 31)
                    if kd == 0: post[pos - 2].append(lambda: e(w1_soff(g, s + 5)))
                    post[pos].append(lambda kd=kd: w1_load(g, s + 5, kd))
        if s in dma_steps:
            c, q = dma_steps[s]
            post[1].append(lambda c=c, q=q: dma_setup(g, c, q))
            for j in range(4):
                post[4 + 8 * j].append(lambda c=c, q=q, j=j: dma(g, c, q, j))
        if s == 3:
            post[0].append(lambda: g.waitvm("w2"))
            k = 0
            for t in range(4):
                for r in range(4):
                    post[1 + k].append(lambda t=t, r=r: e(f"v_perm_b32 v{W2F+4*t+r}, v{W2R+4*r+t}, v{W2R+4*r+t}, v{vSelH}")); k += 1
            def wide():
                e(f"s_cmp_lg_u32 s{sNS}, 0")
                e("s_cbranch_scc1 L_NOW")
                g.waitvm("x")
                e(f"v_and_b32 v{vT2}, 1, v{vL}")
                e(f"v_lshlrev_b32 v{vT2}, 4, v{vT2}")
                e(f"s_lshl_b32 s{sT1}, s{sWWv+7}, 16")
                e(f"s_lshl_b32 s{sT2}, s{sWWv+8}, 16")
                e(f"v_mov_b32 v{vWide}, s{sT1}")
                e(f"v_add_f32 v{vWide}, s{sT2}, v{vWide}")
                e(f"s_and_b32 s{sWWv+6}, s{sWWv+6}, 0xffff")
                for i in range(6):
                    e(f"v_alignbit_b32 v{XR+i}, v{XR+i+1}, v{XR+i}, v{vT2}")
                e(f"v_bfe_u32 v{XR+6}, v{XR+6}, v{vT2}, 16")
                for i in range(7):
                    e(f"v_dot2_f32_bf16 v{vWide}, v{XR+i}, s{sWWv+i}, v{vWide}")
                e(f"s_cmp_eq_u32 s{sRole}, 0")
                e("s_cbranch_scc1 L_NOW")
                e(f"v_readfirstlane_b32 s{sT1}, v{vClaim}")
                e(f"s_cmp_lg_u32 s{sT1}, 0")
                e(f"s_cselect_b32 s{sRole}, 0, 1")
                e("s_cbranch_scc1 L_NOW")
                e(f"s_lshl_b32 s{sT1}, s{sMT}, 10")
                e(f"v_lshlrev_b32 v{vT2}, 3, v{vL}")
                e(f"v_add_u32 v{vT2}, s{sT1}, v{vT2}")
                e(f"global_atomic_swap_x2 {vr(XR,2)}, v{vT2}, {vr(vZ0,2)}, s[{sWS}:{sWS+1}] sc0 sc1")
                e(f"global_atomic_swap_x2 {vr(XR+2,2)}, v{vT2}, {vr(vZ0,2)}, s[{sWS}:{sWS+1}] offset:512 sc0 sc1")
                g.lab("L_NOW")
                g.mark("swap")
            post[20].append(wide)
        if s == 8:
            def flag():
                e(f"s_cmp_eq_u32 s{sRole}, 0")
                e("s_cbranch_scc1 L_NOF")
                g.waitvm("swap")
                e(f"s_lshl_b32 s{sT1}, s{sMT}, 2")
                e(f"v_mov_b32 v{vT2}, s{sT1}")
                e(f"v_mov_b32 v{vT3}, 1")
                e("s_mov_b64 exec, 1")
                e(f"global_store_dword v{vT2}, v{vT3}, s[{sDBG}:{sDBG+1}] offset:128 sc0 sc1")
                e("s_mov_b64 exec, -1")
                g.lab("L_NOF")
            post[22].append(flag)
        if s == 21:
            def rdflag():
                e(f"s_lshl_b32 s{sT1}, s{sMT}, 2")
                e(f"v_mov_b32 v{vT2}, s{sT1}")
                g.vmem(f"global_load_dword v{vFlag}, v{vT2}, s[{sDBG}:{sDBG+1}] offset:128 sc1", tag="flag")
            post[6].append(rdflag)
        if s == NS - 1:
            for m in range(6):
                for t in range(4):
                    q = (m & 1) * 4 + t
                    post[4 * (m + 2) + t].append(lambda m=m, t=t, q=q: e(f"ds_write_b128 v{vRW[m>>1]}, {ACC(m,t)}" + (f" offset:{q*1024}" if q else "")))
        k = 0
        for m in range(8):
            for t in range(4):
                for fn in pre[k]: fn()
                if s == 0:
                    c = "0" if m < 6 else vr(OWN(1, t))
                else:
                    c = ACC(m, t)
                e(f"v_mfma_f32_16x16x32_bf16 {ACC(m,t)}, {vr(F(s&1,t))}, {E(m)}, {c}")
                for fn in post[k]: fn()
                k += 1
        if s == 12: g.stamp(4) if opt.get("stamp_mid") else None
    e("s_waitcnt lgkmcnt(0)")
    e("s_barrier")
    g.stamp(4)
    R0 = RAW0
    def RR(a, q): return R0 + (q * 3 + a) * 4
    for q in range(8):
        for a in range(3):
            base, off = (vRR0, a * 32768 + q * 1024) if a < 2 else (vRR1, q * 1024)
            e(f"ds_read_b128 {vr(RR(a,q))}, v{base}" + (f" offset:{off}" if off else ""))
    P = [T0, T0 + 2]
    for q in range(8):
        u, t = q >> 2, q & 3
        e(f"s_waitcnt lgkmcnt({min(15, 21 - 3*q)})")
        h = OWN(u, t)
        for hh in (0, 2):
            e(f"v_pk_add_f32 {vr(RR(0,q)+hh,2)}, {vr(RR(0,q)+hh,2)}, {vr(RR(1,q)+hh,2)}")
            e(f"v_pk_add_f32 {vr(h+hh,2)}, {vr(h+hh,2)}, {vr(RR(2,q)+hh,2)}")
        for hh in (0, 2):
            e(f"v_pk_add_f32 {vr(h+hh,2)}, {vr(h+hh,2)}, {vr(RR(0,q)+hh,2)}")
        for r in range(4):
            e(f"v_max_f32 v{h+r}, 0, v{h+r}")
        for hh in (0, 2):
            if t == 0 and hh == 0:
                e(f"v_pk_mul_f32 {vr(P[u],2)}, {vr(h+hh,2)}, {vr(W2F+4*t+hh,2)}")
            else:
                e(f"v_pk_fma_f32 {vr(P[u],2)}, {vr(h+hh,2)}, {vr(W2F+4*t+hh,2)}, {vr(P[u],2)}")
    e(f"v_add_f32 v{vT1}, v{P[0]}, v{P[0]+1}")
    e(f"v_add_f32 v{vT2}, v{P[1]}, v{P[1]+1}")
    g.waitvm("flag")
    e(f"v_readfirstlane_b32 s{sT1}, v{vFlag}")
    e("s_nop 0")
    e(f"v_permlane16_swap_b32 v{vT1}, v{vT2}")
    e(f"s_cmp_eq_u32 s{sT1}, 0")
    e(f"v_add_f32 v{vT1}, v{vT1}, v{vT2}")
    e(f"v_mov_b32 v{vT2}, v{vT1}")
    e(f"s_mov_b32 s{sT2}, 0x49000000")
    e(f"s_mov_b32 s{sT3}, 0xc9000000")
    e(f"v_permlane32_swap_b32 v{vT1}, v{vT2}")
    e(f"v_add_f32 v{vT1}, v{vT1}, v{vWide}")
    e(f"v_add_f32 v{vT1}, v{vT1}, v{vT2}")
    e(f"v_min_f32 v{vT1}, s{sT2}, v{vT1}")
    e(f"v_max_f32 v{vT1}, s{sT3}, v{vT1}")
    e(f"v_floor_f32 v{vT2}, v{vT1}")
    e(f"v_sub_f32 v{vT3}, v{vT1}, v{vT2}")
    e(f"v_cvt_i32_f32 v{T0+1}, v{vT2}")
    e(f"v_mul_f32 v{vT3}, 0x4f800000, v{vT3}")
    e(f"v_add_u32 v{T0+1}, 0x1000000, v{T0+1}")
    e(f"v_cvt_u32_f32 v{T0}, v{vT3}")
    e("s_cbranch_scc1 L_SLOW")
    g.lab("L_GO")
    e("s_mov_b32 exec_lo, -1")
    e("s_mov_b32 exec_hi, 0")
    e(f"global_atomic_add_x2 {vr(T0+2,2)}, v{vAt}, {vr(T0,2)}, s[{sWS}:{sWS+1}] sc0 sc1")
    e(f"v_lshrrev_b32 v{vAt}, 2, v{vAt}")
    e("s_waitcnt vmcnt(0)")
    g.stamp(5)
    e(f"v_add_co_u32 v{T0}, vcc, v{T0}, v{T0+2}")
    e(f"v_add_u32 v{vT1}, 0x800000, v{T0+3}")
    e(f"v_lshrrev_b32 v{vT1}, 24, v{vT1}")
    e(f"v_addc_co_u32 v{T0+1}, vcc, v{T0+1}, v{T0+3}, vcc")
    e(f"v_cmp_eq_u32 vcc, 7, v{vT1}")
    e(f"v_cvt_f32_u32 v{T0}, v{T0}")
    e(f"v_subrev_u32 v{T0+1}, 0x8000000, v{T0+1}")
    e(f"v_cvt_f32_i32 v{T0+1}, v{T0+1}")
    e(f"s_and_saveexec_b64 s[{sT2}:{sT2+1}], vcc") if False else e("s_and_b64 exec, exec, vcc")
    e("s_cbranch_execz L_FIN")
    e(f"v_fmac_f32 v{T0+1}, 0x2f800000, v{T0}")
    e(f"v_mul_f32 v{T0+1}, 0xbfb8aa3b, v{T0+1}")
    e(f"v_exp_f32 v{T0+1}, v{T0+1}")
    e("s_nop 0")
    e(f"v_add_f32 v{T0+1}, 1.0, v{T0+1}")
    e(f"v_rcp_f32 v{T0+1}, v{T0+1}")
    e("s_nop 0")
    e(f"v_cvt_pk_bf16_f32 v{T0+1}, v{T0+1}, v{T0+1}")
    e(f"global_store_short v{vAt}, v{T0+1}, s[{sOUT}:{sOUT+1}]")
    g.lab("L_FIN")
    if opt.get("stamp"):
        e("s_mov_b64 exec, -1")
        e(f"s_memrealtime s[{ST0+14}:{ST0+15}]")
        e("s_waitcnt lgkmcnt(0)")
        e("v_cmp_eq_u32 vcc, 0, v0")
        e("s_and_b64 exec, exec, vcc")
        e("s_cbranch_execz L_END")
        e("s_lshl_b32 s3, s2, 6")
        e("s_add_u32 s3, s3, 0x200000")
        e("v_mov_b32 v2, s3")
        for i in range(16): e(f"v_mov_b32 v{4+i}, s{ST0+i}")
        for i in range(4): e(f"global_store_dwordx4 v2, v[{4+4*i}:{7+4*i}], s[{sWS}:{sWS+1}] offset:{16*i}")
    g.lab("L_END")
    e("s_endpgm")
    g.lab("L_SLOW")
    e(f"s_lshl_b32 s{sT1}, s{sMT}, 2")
    e(f"v_mov_b32 v{vT2}, s{sT1}")
    e(f"v_mov_b32 v{vClaim}, 1")
    e("s_mov_b64 exec, 1")
    e(f"global_atomic_add v{vClaim}, v{vT2}, v{vClaim}, s[{sDBG}:{sDBG+1}] sc0 sc1")
    e("s_waitcnt vmcnt(0)")
    e(f"v_readfirstlane_b32 s{sT1}, v{vClaim}")
    e(f"s_cmp_lg_u32 s{sT1}, 0")
    e("s_cbranch_scc1 L_SPIN")
    e("s_mov_b64 exec, -1")
    e(f"s_lshl_b32 s{sT1}, s{sMT}, 10")
    e(f"v_lshlrev_b32 v{vT3}, 3, v{vL}")
    e(f"v_add_u32 v{vT3}, s{sT1}, v{vT3}")
    e(f"global_atomic_swap_x2 {vr(XR,2)}, v{vT3}, {vr(vZ0,2)}, s[{sWS}:{sWS+1}] sc0 sc1")
    e(f"global_atomic_swap_x2 {vr(XR+2,2)}, v{vT3}, {vr(vZ0,2)}, s[{sWS}:{sWS+1}] offset:512 sc0 sc1")
    e(f"v_mov_b32 v{vT3}, 1")
    e("s_waitcnt vmcnt(0)")
    e("s_mov_b64 exec, 1")
    e(f"global_store_dword v{vT2}, v{vT3}, s[{sDBG}:{sDBG+1}] offset:128 sc0 sc1")
    e("s_branch L_GO")
    g.lab("L_SPIN")
    e(f"global_atomic_or v{vClaim}, v{vT2}, v{vZ0}, s[{sDBG}:{sDBG+1}] offset:128 sc0 sc1")
    e("s_waitcnt vmcnt(0)")
    e(f"v_readfirstlane_b32 s{sT1}, v{vClaim}")
    e(f"s_cmp_lg_u32 s{sT1}, 0")
    e("s_cbranch_scc1 L_GO")
    e("s_sleep 8")
    e("s_branch L_SPIN")

    ref = open(REF).read().split("\n")
    hdr = []
    for ln in ref:
        if ln.startswith("; @launch"):
            hdr.append(f"; @launch grid=(256,1,1) block=(256,1,1) lds={LDS_BYTES}"); break
        hdr.append(ln)
    hdr += ['.amdgcn_target "amdgcn-amd-amdhsa--gfx950"', ".text", f".globl {KN}", ".p2align 8", f".type {KN},@function", f"{KN}:"]
    ftr = ['.section .rodata,"a"', ".p2align 6", f".amdhsa_kernel {KN}",
           "  .amdhsa_next_free_vgpr 384", "  .amdhsa_next_free_sgpr 102", "  .amdhsa_accum_offset 256",
           "  .amdhsa_group_segment_fixed_size 0", "  .amdhsa_kernarg_size 96", "  .amdhsa_user_sgpr_count 2",
           "  .amdhsa_user_sgpr_kernarg_segment_ptr 1", "  .amdhsa_system_sgpr_workgroup_id_x 1", ".end_amdhsa_kernel", ""]
    return "\n".join(hdr + g.o + ftr)

if __name__ == "__main__":
    opt = {}
    for a in sys.argv[2:]:
        k, v = a.split("="); opt[k] = int(v)
    open(sys.argv[1], "w").write(gen(opt))
```

```python
import sys
KN = "standalone__deep_cross_wide_deep__recsys_kernel"
REF = "standalone__deep_cross_wide_deep__recsys.s.ref"

ODD_OFF = 0
EVEN_OFF = 65520
IDX_OFF = 131040
RED = 65520
LDS_BYTES = 163840

AD0 = 16
RAW0 = 72
F0 = 136
OWN0 = 168
W2F = 200
W2R = 216
XR = 232
T0 = 240
vL, vG16, vG16x, vW1a, vW1b, vSel, vSelH = 1, 2, 3, 4, 5, 6, 7
vD = [8, 9, 10, 11]
vRW = [12, 13, 14]
vRR0, vRR1 = 15, 244
vWide, vFlag, vAt, vPf, vClaim = 245, 246, 247, 248, 249
vT1, vT2, vT3, vT4 = 250, 251, 252, 253
vZ0 = 254
vWrO, vWrE, vBW = 0, 239, 238
EA0 = 96
C3A = 128
C2A = 192
sIDX, sTAB, sW1 = 28, 32, 36
sX_, sWW, sBW, sB1, sW2, sB2, sOUT, sDBG, sWS = 8, 10, 12, 16, 18, 20, 22, 24, 26
sW, sNS, sMT, sK, sXO, sDM0, sDSO, s65, sT1, sT2, sT3, sRole, sD2, sD3, sMa, sMb = 3, 4, 5, 6, 7, 40, 41, 42, 43, 44, 45, 46, 47, 48, 49, 50
sWWv = 64
ST0 = 80

def AD(f, m):
    b = AD0 + 14 * (m >> 1); o = m & 1
    if f < 4: return b + 4 * o + f
    if f < 6: return b + 8 + 2 * o + (f - 4)
    return b + 12 + o
def RAW(slot, kd): return RAW0 + 16 * slot + 4 * kd
def OWN(u, t): return OWN0 + 16 * u + 4 * t
def vr(b, n=4): return f"v[{b}:{b+n-1}]"
def ar(b, n=4): return f"a[{b}:{b+n-1}]"
def ACC(m, t):
    return ar((m * 4 + t) * 4) if m < 6 else vr(OWN(m - 6, t))

class G:
    def __init__(s, opt):
        s.o = []; s.vm = 0; s.lg = 0; s.tags = {}; s.ltags = {}; s.opt = opt
        s.vdone = 0; s.ldone = 0
    def e(s, x): s.o.append("  " + x)
    def lab(s, x): s.o.append(x + ":")
    def vmem(s, x, tag=None):
        s.e(x); s.vm += 1
        if tag is not None: s.tags[tag] = s.vm
    def lds(s, x, tag=None):
        s.e(x); s.lg += 1
        if tag is not None: s.ltags[tag] = s.lg
    def mark(s, tag): s.tags[tag] = s.vm
    def waitvm(s, tag, force=False):
        t = s.tags[tag]
        if t <= s.vdone and not force: return
        n = min(s.vm - t, 63); s.vdone = max(s.vdone, s.vm - n)
        s.e(f"s_waitcnt vmcnt({n})")
    def waitl(s, tag):
        t = s.ltags[tag]
        if t <= s.ldone: return
        n = min(s.lg - t, 15); s.ldone = max(s.ldone, s.lg - n)
        s.e(f"s_waitcnt lgkmcnt({n})")
    def waitl0(s):
        s.ldone = s.lg; s.e("s_waitcnt lgkmcnt(0)")
    def stamp(s, name):
        L = s.opt.get("stamp")
        if L and name in L:
            i = 1 + L.index(name)
            s.e(f"s_memtime s[{ST0+2*i}:{ST0+2*i+1}]"); s.waitl0()

def stepinfo(s):
    h, r = divmod(s, 13)
    if r < 6: return (r, 2 * h)
    if r == 6: return (6, 2 * h)
    return (r - 7, 2 * h + 1)

def gen(opt):
    g = G(opt); e = g.e
    NS = 26
    TAIL = opt.get("tail", 1)
    def Fb(s):
        if TAIL == 2 and s == 25: return RAW(2, 0)
        return F0 + 16 * (s & 1)
    def F(s, t): return Fb(s) + 4 * t
    def w1_soff(s):
        f, c = stepinfo(s)
        if f < 6: e(f"s_mov_b32 s{sK}, {f*131072 + c*32768}")
        else: e(f"s_add_u32 s{sK}, s{sXO}, {c*32768}")
    def w1_load(s, kd):
        if kd == 0: w1_soff(s)
        if opt.get("no_w1") and s > 4:
            g.tags[("raw", s, kd)] = g.tags[("raw", 4, 3)]; return
        r = RAW(s % 4, kd)
        g.vmem(f"buffer_load_dwordx4 {vr(r)}, v{vW1a if kd < 2 else vW1b}, s[{sW1}:{sW1+3}], s{sK} offen" + (" offset:2048" if kd & 1 else ""), tag=("raw", s, kd))
    def e_read(u, s, m):
        f, c = stepinfo(s)
        off = 0 if f == 6 else (EVEN_OFF if c % 2 == 0 else ODD_OFF)
        g.lds(f"ds_read_b128 {ar(EA0 + 4*(u % 8))}, v{AD(f, m)}" + (f" offset:{off}" if off else ""), tag=("E", u))
    def xf_mov(s, kd, j):
        if j == 0: g.waitvm(("raw", s, kd))
        e(f"v_mov_b32_dpp v{T0 + (j & 3)}, v{RAW(s % 4, kd) + j} row_ror:8 row_mask:0xf bank_mask:0xf")
    def xf_perm(s, kd, j):
        e(f"v_perm_b32 v{F(s, j) + kd}, v{T0 + (j & 3)}, v{RAW(s % 4, kd) + j}, v{vSel}")
    def off(x): return f" offset:{x}" if x else ""

    e("s_cmp_ge_u32 s2, 256")
    e("s_cbranch_scc1 L_END")
    e(f"s_load_dwordx2 s[{sIDX}:{sIDX+1}], s[0:1], 0")
    e(f"s_load_dwordx2 s[{sTAB}:{sTAB+1}], s[0:1], 8")
    e(f"s_load_dwordx2 s[{sW1}:{sW1+1}], s[0:1], 40")
    e(f"s_load_dwordx4 s[16:19], s[0:1], 48")
    e(f"s_load_dwordx4 s[8:11], s[0:1], 16")
    e(f"s_load_dwordx2 s[12:13], s[0:1], 32")
    e(f"s_load_dwordx8 s[20:27], s[0:1], 64")
    if opt.get("stamp"):
        e(f"s_memrealtime s[{ST0+12}:{ST0+13}]")
        e(f"s_memtime s[{ST0}:{ST0+1}]")
        for i in range(1, 6): e(f"s_mov_b64 s[{ST0+2*i}:{ST0+2*i+1}], 0")
    e(f"v_lshrrev_b32 v{vT1}, 6, v0")
    e(f"v_and_b32 v{vL}, 63, v0")
    e(f"v_readfirstlane_b32 s{sW}, v{vT1}")
    e(f"s_and_b32 s{sNS}, s2, 7")
    e(f"s_lshr_b32 s{sMT}, s2, 3")
    e(f"s_mov_b32 s{sIDX+2}, 425984")
    e(f"s_mov_b32 s{sIDX+3}, 0x00020000")
    e(f"s_mov_b32 s{sTAB+2}, 256000")
    e(f"s_mov_b32 s{sTAB+3}, 0x00020000")
    e(f"s_mov_b32 s{sW1+2}, 3407872")
    e(f"s_mov_b32 s{sW1+3}, 0x00020000")
    e(f"s_mul_i32 s{sT1}, s{sW}, 3072")
    e(f"s_add_u32 m0, s{sT1}, {IDX_OFF}")
    e(f"s_mul_i32 s{sT2}, s{sMT}, 13312")
    e(f"s_add_u32 s{sT2}, s{sT2}, s{sT1}")
    e(f"v_lshlrev_b32 v{vT2}, 4, v{vL}")
    e(f"v_and_b32 v{vG16}, 48, v{vL}")
    e(f"v_lshlrev_b32 v{vW1a}, 9, v{vG16}")
    e(f"v_and_b32 v{vT1}, 8, v{vL}")
    e(f"v_lshl_add_u32 v{vW1a}, v{vT1}, 7, v{vW1a}")
    e(f"v_and_b32 v{vT3}, 7, v{vL}")
    e(f"v_lshl_add_u32 v{vW1a}, v{vT3}, 4, v{vW1a}")
    e(f"s_mul_i32 s{sT1}, s{sW}, {6*131072}")
    e(f"s_lshl_b32 s{sT3}, s{sNS}, 7")
    e(f"s_add_u32 s{sT1}, s{sT1}, s{sT3}")
    e(f"v_add_u32 v{vW1a}, s{sT1}, v{vW1a}")
    e(f"v_add_u32 v{vW1b}, 4096, v{vW1a}")
    e(f"v_lshrrev_b32 v{vT3}, 2, v{vL}")
    e(f"v_lshlrev_b32 v{vD[0]}, 8, v{vT3}")
    e(f"v_and_b32 v{vT3}, 3, v{vL}")
    e(f"v_lshl_add_u32 v{vD[0]}, v{vT3}, 4, v{vD[0]}")
    for j in range(1, 4): e(f"v_add_u32 v{vD[j]}, {j*3056}, v{vD[0]}")
    e(f"s_lshl_b32 s{sT1}, s{sW}, 4")
    e(f"s_min_u32 s{sT1}, s{sT1}, 47")
    e(f"s_mul_i32 s{sDM0}, s{sT1}, 1040")
    e(f"s_lshl_b32 s{sDSO}, s{sT1}, 12")
    PF = opt.get("pf", 3)
    e(f"v_min_u32 v{vT4}, 25, v{vL}")
    e(f"v_lshlrev_b32 v{vT4}, 10, v{vT4}")
    e(f"s_mul_i32 s{sMa}, s{sMT}, 104")
    e(f"s_mul_i32 s{sMb}, s{sW}, 26")
    e(f"s_add_u32 s{sMa}, s{sMa}, s{sMb}")
    e(f"s_lshl_b32 s{sMa}, s{sMa}, 10")
    e(f"s_add_u32 s{sMa}, s{sMa}, s{sT3}")
    e(f"v_and_b32 v{vT3}, 15, v{vL}")
    e(f"v_lshlrev_b32 v{vT3}, 7, v{vT3}")
    e(f"s_lshl_b32 s{sMb}, s{sMT}, 13")
    e(f"s_lshl_b32 s{sD2}, s{sW}, 11")
    e(f"s_add_u32 s{sMb}, s{sMb}, s{sD2}")
    e("s_waitcnt lgkmcnt(0)")
    g.stamp("karg")
    for j in range(4):
        g.vmem(f"buffer_load_dwordx4 v{vT2}, s[{sIDX}:{sIDX+3}], s{sT2} offen{off(j*1024)} lds", tag="idx")
    if PF & 1: g.vmem(f"buffer_load_dword v{vPf}, v{vT3}, s[{sTAB}:{sTAB+3}], s{sMb} offen")
    for kd in range(4): w1_load(0, kd)
    if PF & 2: g.vmem(f"buffer_load_dword v{vPf}, v{vT4}, s[{sW1}:{sW1+3}], s{sMa} offen")
    e(f"s_load_dwordx4 s[{sWWv}:{sWWv+3}], s[{sWW}:{sWW+1}], 0")
    e(f"s_load_dwordx2 s[{sWWv+4}:{sWWv+5}], s[{sWW}:{sWW+1}], 16")
    e(f"s_load_dword s{sWWv+6}, s[{sWW}:{sWW+1}], 24")
    e(f"s_load_dword s{sWWv+7}, s[{sBW}:{sBW+1}], 0")
    e(f"s_load_dword s{sWWv+8}, s[{sB2}:{sB2+1}], 0")
    P01 = []
    for q in range(4):
        for jj in (0, 2):
            for c in (0, 1):
                for j in (jj, jj + 1):
                    def th(q=q, j=j, c=c, jj=jj):
                        if jj == 0 and c == 0 and j == 0:
                            e(f"s_add_u32 s{sMa}, s{sDM0}, {EVEN_OFF + q*4160}")
                            e(f"s_add_u32 s{sMb}, s{sDM0}, {ODD_OFF + q*4160}")
                            e(f"s_add_u32 s{sD2}, s{sDSO}, {q*16384}")
                            e(f"s_add_u32 s{sD3}, s{sDSO}, {q*16384 + 64}")
                        if j == jj:
                            e(f"s_mov_b32 m0, s{sMb if c else sMa}")
                            e("s_nop 0")
                        g.vmem(f"buffer_load_dwordx4 v{vD[j]}, s[{sTAB}:{sTAB+3}], s{sD3 if c else sD2} offen{off(j*1040)} lds", tag="p01")
                    P01.append(th)
    NP1 = opt.get("np1", 8)
    for th in P01[:NP1]: th()
    e(f"v_mov_b32 v{vSel}, 0x05040100")
    e(f"v_mov_b32 v{vT4}, 0x03020706")
    e(f"v_cmp_ne_u32 vcc, 0, v{vT1}")
    e(f"s_mov_b32 s{s65}, 65")
    e(f"s_cmp_lt_u32 s{sW}, 2")
    e(f"v_cndmask_b32 v{vSel}, v{vSel}, v{vT4}, vcc")
    e(f"s_cselect_b32 s{sT1}, {EVEN_OFF}, {ODD_OFF}")
    e(f"v_add_u32 v{vG16x}, s{sT1}, v{vG16}")
    e(f"v_mov_b32 v{vSelH}, 0x01000c0c")
    e(f"v_mov_b32 v{vT4}, 0x03020c0c")
    e(f"v_cmp_lt_u32 vcc, 31, v{vL}")
    e(f"s_and_b32 s{sT1}, s{sW}, 1")
    e(f"s_add_u32 s{sT1}, s{sT1}, 24")
    e(f"v_cndmask_b32 v{vSelH}, v{vSelH}, v{vT4}, vcc")
    e(f"v_and_b32 v{vBW}, 16, v{vL}")
    e(f"v_lshlrev_b32 v{vBW}, 2, v{vBW}")
    e(f"v_add_u32 v{vBW}, s{sT3}, v{vBW}")
    e(f"s_mul_i32 s{sXO}, s{sW}, 6")
    e(f"s_sub_u32 s{sXO}, s{sT1}, s{sXO}")
    e(f"s_lshl_b32 s{sT3}, s{sXO}, 2")
    e(f"s_lshl_b32 s{sXO}, s{sXO}, 17")
    e(f"s_lshr_b32 s{sT1}, s{sW}, 1")
    e(f"s_lshl_b32 s{sT1}, s{sT1}, 15")
    e(f"s_add_u32 s{sXO}, s{sXO}, s{sT1}")
    e(f"v_and_b32 v{vT1}, 15, v{vL}")
    e(f"v_mul_u32_u24 v{vT1}, 104, v{vT1}")
    e(f"s_mul_i32 s{sT1}, s{sW}, 24")
    e(f"s_add_u32 s{sT1}, s{sT1}, {IDX_OFF}")
    e(f"v_add_u32 v{vT1}, s{sT1}, v{vT1}")
    for a in range(4):
        e(f"s_add_u32 s{sT1}, s{sW}, {a+1}")
        e(f"s_and_b32 s{sT1}, s{sT1}, 3")
        e(f"s_mul_i32 s{sT2}, s{sT1}, 3328")
        e(f"v_add_u32 v{T0+a}, s{sT2}, v{vT1}")
        if a < 3:
            e(f"s_lshl_b32 s{sT1}, s{sT1}, 13")
            e(f"s_add_u32 s{sT1}, s{sT1}, {RED + a*32768}")
            e(f"v_add_u32 v{vRW[a]}, s{sT1}, v{vT2}")
    e(f"s_lshl_b32 s{sT1}, s{sW}, 13")
    e(f"s_add_u32 s{sT1}, s{sT1}, {RED}")
    e(f"v_add_u32 v{vRR0}, s{sT1}, v{vT2}")
    e(f"v_add_u32 v{vRR1}, 0x10000, v{vRR0}")
    for a in range(4): e(f"v_add_u32 v{XR+a}, s{sT3}, v{T0+a}")
    e(f"v_add_u32 v{vWrO}, s{sDM0}, v{vT2}")
    e(f"v_add_u32 v{vWrE}, {EVEN_OFF}, v{vWrO}")
    e(f"s_lshl_b32 s{sT1}, s{sMT}, 7")
    e(f"s_lshl_b32 s{sT2}, s{sW}, 5")
    e(f"s_add_u32 s{sT1}, s{sT1}, s{sT2}")
    e(f"v_and_b32 v{vT4}, 31, v{vL}")
    e(f"v_add_u32 v{vT4}, s{sT1}, v{vT4}")
    e(f"v_lshlrev_b32 v{vAt}, 3, v{vT4}")
    e(f"v_mov_b32 v{vWide}, 0")
    e(f"v_mov_b32 v{vZ0}, 0")
    e(f"v_mov_b32 v{vZ0+1}, 0")
    e(f"s_or_b32 s{sT1}, s{sNS}, s{sW}")
    e(f"s_cmp_eq_u32 s{sT1}, 0")
    e(f"s_cselect_b32 s{sRole}, 1, 0")
    g.stamp("iss")
    g.waitvm("idx")
    e("s_barrier")
    g.stamp("idx")
    for a in range(4):
        b = AD0 + 14 * a
        e(f"ds_read2_b64 {vr(b)}, v{T0+a} offset0:0 offset1:1")
        e(f"ds_read2_b64 {vr(b+4)}, v{T0+a} offset0:208 offset1:209")
        e(f"ds_read2_b64 {vr(b+8)}, v{T0+a} offset0:2 offset1:210")
        e(f"ds_read_b32 v{b+12}, v{XR+a}")
        e(f"ds_read_b32 v{b+13}, v{XR+a} offset:1664")
    NP2 = opt.get("np2", 12)
    for th in P01[NP1:NP2]: th()
    g.waitl0()
    g.stamp("lidx")
    V = []
    for f in range(7):
        for m in range(8):
            V.append(lambda f=f, m=m: e(f"v_mad_u32_u24 v{AD(f,m)}, v{AD(f,m)}, s{s65}, v{vG16x if f == 6 else vG16}"))
        for m in range(8):
            V.append(lambda f=f, m=m: e(f"v_and_b32 v{AD(f,m)}, -16, v{AD(f,m)}"))
    for kd in range(4):
        for j in range(4): V.append(lambda kd=kd, j=j: xf_mov(0, kd, j))
        for j in range(4): V.append(lambda kd=kd, j=j: xf_perm(0, kd, j))
    M = P01[NP2:16] + [lambda kd=kd: w1_load(1, kd) for kd in range(4)] + P01[16:] + [lambda kd=kd: w1_load(2, kd) for kd in range(4)]
    per = (len(V) + len(M) - 1) // len(M)
    vi = 0
    for th in M:
        th()
        for fn in V[vi:vi + per]: fn()
        vi += per
    for fn in V[vi:]: fn()
    g.stamp("f0")
    g.waitvm("p01")
    e("s_barrier")
    g.stamp("p01")

    units = []
    for s in range(NS - TAIL):
        for m in range(8): units.append((s, m))
    ts = list(range(NS - TAIL, NS))
    for m in range(6):
        for s in ts: units.append((s, m))
    for s in ts:
        for m in (6, 7): units.append((s, m))
    NU = len(units); NK = 4 * NU
    pre = [[] for _ in range(NK + 1)]
    post = [[] for _ in range(NK)]
    def K(s, i): return 32 * s + i
    for u in range(8): e_read(u, *units[u])
    g.stamp("s0")
    BAR12 = opt.get("bar12", 8)
    for u in range(NU):
        pre[4 * u].append(lambda u=u: g.waitl(("E", u)))
        if u >= 8:
            pos = 4 * (u - 8) + 3
            if units[u][0] == 13 and pos < K(12, BAR12): pos = K(12, BAR12) + (u % 8)
            post[pos].append(lambda u=u: e_read(u, *units[u]))
    def place_xf(s, k0, k1):
        ops = []
        for kd in range(4):
            for j in range(4):
                ops.append(lambda kd=kd, j=j: xf_mov(s, kd, j))
                ops.append(lambda kd=kd, j=j: xf_perm(s, kd, j))
        for i, fn in enumerate(ops):
            post[k0 + (i * (k1 - k0)) // 32].append(fn)
    for s in range(1, NS):
        if TAIL == 2 and s >= 23:
            a = K(22, 0); L = 64 // 3
            place_xf(s, a + (s - 23) * L + (0 if s < 24 else (32 - L if s == 24 else 0)) * 0, a + (s - 22) * L) if False else None
        else:
            place_xf(s, K(s - 1, 0), K(s, 0))
    if TAIL == 2:
        place_xf(23, K(22, 0), K(22, 20))
        place_xf(25, K(22, 20), K(23, 8))
        place_xf(24, K(23, 8), K(24, 0))
    def t_load(p, c):
        q, j = p >> 2, p & 3
        if c == 2 and j == 0:
            e(f"s_add_u32 s{sD2}, s{sDSO}, {q*16384 + 128}")
        if c == 2 and p >= NC2A:
            e(f"s_add_u32 m0, s{sDM0}, {EVEN_OFF + q*4160}")
            e("s_nop 0")
            g.vmem(f"buffer_load_dwordx4 v{vD[j]}, s[{sTAB}:{sTAB+3}], s{sD2} offen{off(j*1040)} lds", tag="c2dma")
        else:
            r = (C2A if c == 2 else C3A) + 4 * p
            g.vmem(f"buffer_load_dwordx4 {ar(r)}, v{vD[j]}, s[{sTAB}:{sTAB+3}], s{sD2} offen{off(j*1040 + (64 if c == 3 else 0))}", tag=("t", p, c))
    def t_write(p, c):
        g.waitvm(("t", p, c))
        r = (C2A if c == 2 else C3A) + 4 * p
        g.lds(f"ds_write_b128 v{vWrE if c == 2 else vWrO}, {ar(r)}{off(p*1040)}", tag=("tw", c))
    NC2A = 9
    R = lambda s: [("R", s, kd) for kd in range(4)]
    T = [("T", p, c) for p in range(16) for c in (2, 3)]
    sched = {0: R(3) + R(4)[:3], 1: R(4)[3:] + R(5) + T[0:2]}
    ti = 2
    for s in range(2, 10):
        r = R(s + 4)
        if s % 2 == 0: sched[s] = r[:2] + T[ti:ti+2] + r[2:] + T[ti+2:ti+3]
        else: sched[s] = T[ti:ti+1] + r[:2] + T[ti+1:ti+3] + r[2:]
        ti += 3
    sched[10] = T[ti:ti+6] + R(14)[:1]
    sched[11] = R(14)[1:] + R(15)
    for s in range(12, 22): sched[s] = R(s + 4)
    VP7 = [1, 5, 10, 14, 18, 22, 28]
    VP4 = [2, 10, 18, 26]
    for s, L in sched.items():
        P = VP7 if len(L) == 7 else VP4
        for it, p in zip(L, P):
            if it[0] == "R": post[K(s, p)].append(lambda it=it: w1_load(it[1], it[2]))
            else: post[K(s, p)].append(lambda it=it: t_load(it[1], it[2]))
    wl = [(7, 8), (7, 24), (8, 8), (8, 24), (9, 8), (9, 24), (10, 8), (10, 24), (11, 8)]
    for p in range(NC2A): post[K(*wl[p])].append(lambda p=p: t_write(p, 2))
    wl = [(12, 14), (12, 22), (12, 30)] + [(s, i) for s in range(13, 17) for i in (6, 14, 22)] + [(17, 6)]
    for p in range(16): post[K(*wl[p])].append(lambda p=p: t_write(p, 3))
    pre[K(7, 0)].append(lambda: e("s_barrier"))
    def bar12():
        g.waitvm("c2dma"); g.waitl(("tw", 2)); g.waitl(("E", 8 * 12 + 7)); e("s_barrier")
    pre[K(12, BAR12)].append(bar12)
    def bar18():
        g.waitl(("tw", 3)); e("s_barrier")
    pre[K(18, 3)].append(bar18)
    pre[K(21, 0)].append(lambda: e("s_barrier"))
    def claim():
        e(f"s_cmp_eq_u32 s{sRole}, 0")
        e("s_cbranch_scc1 L_NOC")
        e(f"s_lshl_b32 s{sT1}, s{sMT}, 2")
        e(f"v_mov_b32 v{vT2}, s{sT1}")
        e(f"v_mov_b32 v{vClaim}, 1")
        e("s_mov_b64 exec, 1")
        e(f"global_atomic_add v{vClaim}, v{vT2}, v{vClaim}, s[{sDBG}:{sDBG+1}] sc0 sc1")
        e("s_mov_b64 exec, -1")
        g.lab("L_NOC")
        g.mark("claim")
    post[K(0, 30)].append(claim)
    def swap():
        e(f"s_cmp_eq_u32 s{sRole}, 0")
        e("s_cbranch_scc1 L_NOW")
        g.waitvm("claim", force=True)
        e(f"v_readfirstlane_b32 s{sT1}, v{vClaim}")
        e(f"s_cmp_lg_u32 s{sT1}, 0")
        e(f"s_cselect_b32 s{sRole}, 0, 1")
        e("s_cbranch_scc1 L_NOW")
        e(f"s_lshl_b32 s{sT1}, s{sMT}, 10")
        e(f"v_lshlrev_b32 v{vT2}, 3, v{vL}")
        e(f"v_add_u32 v{vT2}, s{sT1}, v{vT2}")
        e(f"global_atomic_swap_x2 {vr(XR,2)}, v{vT2}, {vr(vZ0,2)}, s[{sWS}:{sWS+1}] sc0 sc1")
        e(f"global_atomic_swap_x2 {vr(XR+2,2)}, v{vT2}, {vr(vZ0,2)}, s[{sWS}:{sWS+1}] offset:512 sc0 sc1")
        g.lab("L_NOW")
        g.mark("swap")
    def guard(fn):
        def w():
            a, b = g.vdone, g.ldone
            fn()
            g.vdone, g.ldone = a, b
        return w
    post[K(4, 30)].append(guard(swap))
    def flag():
        e(f"s_cmp_eq_u32 s{sRole}, 0")
        e("s_cbranch_scc1 L_NOF")
        g.waitvm("swap", force=True)
        e(f"s_lshl_b32 s{sT1}, s{sMT}, 2")
        e(f"v_mov_b32 v{vT2}, s{sT1}")
        e(f"v_mov_b32 v{vT3}, 1")
        e("s_mov_b64 exec, 1")
        e(f"global_store_dword v{vT2}, v{vT3}, s[{sDBG}:{sDBG+1}] offset:128 sc0 sc1")
        e("s_mov_b64 exec, -1")
        g.lab("L_NOF")
    post[K(9, 30)].append(guard(flag))
    for r in range(4):
        post[K(13 + r, 30)].append(lambda r=r: g.vmem(f"global_load_dwordx4 {vr(W2R+4*r)}, v{vBW}, s[{sW2}:{sW2+1}]{off(16*r)}", tag="w2"))
    post[K(19, 0)].append(lambda: g.waitvm("w2"))
    k = 0
    for t in range(4):
        for r in range(4):
            post[K(19, 2 * k)].append(lambda t=t, r=r: e(f"v_perm_b32 v{W2F+4*t+r}, v{W2R+4*r+t}, v{W2R+4*r+t}, v{vSelH}")); k += 1
    for r in range(4):
        post[K(20 + (r >> 1), 6 + 16 * (r & 1))].append(lambda r=r: g.vmem(f"global_load_dwordx4 {vr(W2R+4*r)}, v{vBW}, s[{sB1}:{sB1+1}]{off(16*r)}", tag="b1"))
    def xload():
        e(f"s_cmp_lg_u32 s{sNS}, 0")
        e("s_cbranch_scc1 L_NOX")
        e(f"v_lshrrev_b32 v{vT2}, 3, v{vAt}")
        e(f"v_mul_u32_u24 v{vT2}, 26, v{vT2}")
        e(f"v_and_b32 v{vT2}, -4, v{vT2}")
        e(f"global_load_dwordx4 {vr(XR)}, v{vT2}, s[{sX_}:{sX_+1}]")
        e(f"global_load_dwordx2 {vr(XR+4,2)}, v{vT2}, s[{sX_}:{sX_+1}] offset:16")
        e(f"global_load_dword v{vPf}, v{vT2}, s[{sX_}:{sX_+1}] offset:24")
        g.lab("L_NOX")
        g.mark("x")
    post[K(22, 30)].append(xload)
    def rdflag():
        e(f"s_lshl_b32 s{sT1}, s{sMT}, 2")
        e(f"v_mov_b32 v{vT3}, s{sT1}")
        g.vmem(f"global_load_dword v{vFlag}, v{vT3}, s[{sDBG}:{sDBG+1}] offset:128 sc1", tag="flag")
    post[K(23, 6)].append(rdflag)
    last = {}
    for u, (s, m) in enumerate(units): last[m] = u
    for m in range(6):
        for t in range(4):
            q = (m & 1) * 4 + t
            kk = 4 * (last[m] + 2) + t if TAIL == 1 else 4 * (last[m] + 2) + 2 * t
            post[kk].append(lambda m=m, t=t, q=q: g.lds(f"ds_write_b128 v{vRW[m>>1]}, {ACC(m,t)}{off(q*1024)}"))
    k = 0
    for u, (s, m) in enumerate(units):
        for t in range(4):
            for fn in pre[k]: fn()
            c = "0" if s == 0 else ACC(m, t)
            e(f"v_mfma_f32_16x16x32_bf16 {ACC(m,t)}, {vr(F(s,t))}, {ar(EA0 + 4*(u % 8))}, {c}")
            for fn in post[k]: fn()
            k += 1
        if u % 8 == 7: g.stamp(f"s{u//8+1}")
    g.waitl0()
    e("s_barrier")
    g.stamp("red")
    R0 = RAW0
    def RR(a, q): return R0 + (q * 3 + a) * 4
    for q in range(8):
        for a in range(3):
            base, o = (vRR0, a * 32768 + q * 1024) if a < 2 else (vRR1, q * 1024)
            g.lds(f"ds_read_b128 {vr(RR(a,q))}, v{base}{off(o)}", tag=("rr", q))
    g.waitvm("b1")
    for t in range(4):
        for r in range(4):
            e(f"v_perm_b32 v{AD0+4*t+r}, v{W2R+4*r+t}, v{W2R+4*r+t}, v{vSelH}")
    for u in range(2):
        for t in range(4):
            for hh in (0, 2):
                e(f"v_pk_add_f32 {vr(OWN(u,t)+hh,2)}, {vr(OWN(u,t)+hh,2)}, {vr(AD0+4*t+hh,2)}")
    e(f"s_cmp_lg_u32 s{sNS}, 0")
    e("s_cbranch_scc1 L_NOWD")
    guard(lambda: g.waitvm("x", force=True))()
    e(f"v_and_b32 v{vT2}, 1, v{vL}")
    e(f"v_lshlrev_b32 v{vT2}, 4, v{vT2}")
    e(f"s_lshl_b32 s{sT1}, s{sWWv+7}, 16")
    e(f"s_lshl_b32 s{sT2}, s{sWWv+8}, 16")
    e(f"v_mov_b32 v{vWide}, s{sT1}")
    e(f"v_add_f32 v{vWide}, s{sT2}, v{vWide}")
    e(f"s_and_b32 s{sWWv+6}, s{sWWv+6}, 0xffff")
    XX = [XR + i for i in range(6)] + [vPf]
    for i in range(6):
        e(f"v_alignbit_b32 v{XX[i]}, v{XX[i+1]}, v{XX[i]}, v{vT2}")
    e(f"v_bfe_u32 v{XX[6]}, v{XX[6]}, v{vT2}, 16")
    for i in range(7):
        e(f"v_dot2_f32_bf16 v{vWide}, v{XX[i]}, s{sWWv+i}, v{vWide}")
    g.lab("L_NOWD")
    P = [T0, T0 + 2]
    for q in range(8):
        u, t = q >> 2, q & 3
        g.waitl(("rr", q))
        h = OWN(u, t)
        for hh in (0, 2):
            e(f"v_pk_add_f32 {vr(RR(0,q)+hh,2)}, {vr(RR(0,q)+hh,2)}, {vr(RR(1,q)+hh,2)}")
            e(f"v_pk_add_f32 {vr(h+hh,2)}, {vr(h+hh,2)}, {vr(RR(2,q)+hh,2)}")
        for hh in (0, 2):
            e(f"v_pk_add_f32 {vr(h+hh,2)}, {vr(h+hh,2)}, {vr(RR(0,q)+hh,2)}")
        for r in range(4):
            e(f"v_max_f32 v{h+r}, 0, v{h+r}")
        for hh in (0, 2):
            if t == 0 and hh == 0:
                e(f"v_pk_mul_f32 {vr(P[u],2)}, {vr(h+hh,2)}, {vr(W2F+4*t+hh,2)}")
            else:
                e(f"v_pk_fma_f32 {vr(P[u],2)}, {vr(h+hh,2)}, {vr(W2F+4*t+hh,2)}, {vr(P[u],2)}")
    e(f"v_add_f32 v{vT1}, v{P[0]}, v{P[0]+1}")
    e(f"v_add_f32 v{vT2}, v{P[1]}, v{P[1]+1}")
    g.waitvm("flag")
    e(f"v_readfirstlane_b32 s{sT1}, v{vFlag}")
    e("s_nop 0")
    e(f"v_permlane16_swap_b32 v{vT1}, v{vT2}")
    e(f"s_cmp_eq_u32 s{sT1}, 0")
    e(f"v_add_f32 v{vT1}, v{vT1}, v{vT2}")
    e(f"v_mov_b32 v{vT2}, v{vT1}")
    e(f"s_mov_b32 s{sT2}, 0x49000000")
    e(f"s_mov_b32 s{sT3}, 0xc9000000")
    e(f"v_permlane32_swap_b32 v{vT1}, v{vT2}")
    e(f"v_add_f32 v{vT1}, v{vT1}, v{vWide}")
    e(f"v_add_f32 v{vT1}, v{vT1}, v{vT2}")
    e(f"v_min_f32 v{vT1}, s{sT2}, v{vT1}")
    e(f"v_max_f32 v{vT1}, s{sT3}, v{vT1}")
    e(f"v_floor_f32 v{vT2}, v{vT1}")
    e(f"v_sub_f32 v{vT3}, v{vT1}, v{vT2}")
    e(f"v_cvt_i32_f32 v{T0+1}, v{vT2}")
    e(f"v_mul_f32 v{vT3}, 0x4f800000, v{vT3}")
    e(f"v_add_u32 v{T0+1}, 0x1000000, v{T0+1}")
    e(f"v_cvt_u32_f32 v{T0}, v{vT3}")
    e("s_cbranch_scc1 L_SLOW")
    g.lab("L_GO")
    e("s_mov_b32 exec_lo, -1")
    e("s_mov_b32 exec_hi, 0")
    e(f"global_atomic_add_x2 {vr(T0+2,2)}, v{vAt}, {vr(T0,2)}, s[{sWS}:{sWS+1}] sc0 sc1")
    e(f"v_lshrrev_b32 v{vAt}, 2, v{vAt}")
    e("s_waitcnt vmcnt(0)")
    g.stamp("atom")
    e(f"v_add_co_u32 v{T0}, vcc, v{T0}, v{T0+2}")
    e(f"v_add_u32 v{vT1}, 0x800000, v{T0+3}")
    e(f"v_lshrrev_b32 v{vT1}, 24, v{vT1}")
    e(f"v_addc_co_u32 v{T0+1}, vcc, v{T0+1}, v{T0+3}, vcc")
    e(f"v_cmp_eq_u32 vcc, 7, v{vT1}")
    e(f"v_cvt_f32_u32 v{T0}, v{T0}")
    e(f"v_subrev_u32 v{T0+1}, 0x8000000, v{T0+1}")
    e(f"v_cvt_f32_i32 v{T0+1}, v{T0+1}")
    e("s_and_b64 exec, exec, vcc")
    e("s_cbranch_execz L_FIN")
    e(f"v_fmac_f32 v{T0+1}, 0x2f800000, v{T0}")
    e(f"v_mul_f32 v{T0+1}, 0xbfb8aa3b, v{T0+1}")
    e(f"v_exp_f32 v{T0+1}, v{T0+1}")
    e("s_nop 0")
    e(f"v_add_f32 v{T0+1}, 1.0, v{T0+1}")
    e(f"v_rcp_f32 v{T0+1}, v{T0+1}")
    e("s_nop 0")
    e(f"v_cvt_pk_bf16_f32 v{T0+1}, v{T0+1}, v{T0+1}")
    e(f"global_store_short v{vAt}, v{T0+1}, s[{sOUT}:{sOUT+1}]")
    g.lab("L_FIN")
    if opt.get("stamp"):
        e("s_mov_b64 exec, -1")
        e(f"s_memrealtime s[{ST0+14}:{ST0+15}]")
        e("s_waitcnt lgkmcnt(0)")
        e(f"s_cmp_lg_u32 s{sW}, 0")
        e("s_cbranch_scc1 L_END")
        e("s_mov_b64 exec, 1")
        e("s_lshl_b32 s3, s2, 6")
        e("s_add_u32 s3, s3, 0x200000")
        e("v_mov_b32 v2, s3")
        for i in range(16): e(f"v_mov_b32 v{4+i}, s{ST0+i}")
        for i in range(4): e(f"global_store_dwordx4 v2, v[{4+4*i}:{7+4*i}], s[{sWS}:{sWS+1}] offset:{16*i}")
    g.lab("L_END")
    e("s_endpgm")
    g.lab("L_SLOW")
    e(f"s_lshl_b32 s{sT1}, s{sMT}, 2")
    e(f"v_mov_b32 v{vT2}, s{sT1}")
    e(f"v_mov_b32 v{vClaim}, 1")
    e("s_mov_b64 exec, 1")
    e(f"global_atomic_add v{vClaim}, v{vT2}, v{vClaim}, s[{sDBG}:{sDBG+1}] sc0 sc1")
    e("s_waitcnt vmcnt(0)")
    e(f"v_readfirstlane_b32 s{sT1}, v{vClaim}")
    e(f"s_cmp_lg_u32 s{sT1}, 0")
    e("s_cbranch_scc1 L_SPIN")
    e("s_mov_b64 exec, -1")
    e(f"s_lshl_b32 s{sT1}, s{sMT}, 10")
    e(f"v_lshlrev_b32 v{vT3}, 3, v{vL}")
    e(f"v_add_u32 v{vT3}, s{sT1}, v{vT3}")
    e(f"global_atomic_swap_x2 {vr(XR,2)}, v{vT3}, {vr(vZ0,2)}, s[{sWS}:{sWS+1}] sc0 sc1")
    e(f"global_atomic_swap_x2 {vr(XR+2,2)}, v{vT3}, {vr(vZ0,2)}, s[{sWS}:{sWS+1}] offset:512 sc0 sc1")
    e(f"v_mov_b32 v{vT3}, 1")
    e("s_waitcnt vmcnt(0)")
    e("s_mov_b64 exec, 1")
    e(f"global_store_dword v{vT2}, v{vT3}, s[{sDBG}:{sDBG+1}] offset:128 sc0 sc1")
    e("s_branch L_GO")
    g.lab("L_SPIN")
    e(f"global_atomic_or v{vClaim}, v{vT2}, v{vZ0}, s[{sDBG}:{sDBG+1}] offset:128 sc0 sc1")
    e("s_waitcnt vmcnt(0)")
    e(f"v_readfirstlane_b32 s{sT1}, v{vClaim}")
    e(f"s_cmp_lg_u32 s{sT1}, 0")
    e("s_cbranch_scc1 L_GO")
    e("s_sleep 8")
    e("s_branch L_SPIN")

    ref = open(REF).read().split("\n")
    hdr = []
    for ln in ref:
        if ln.startswith("; @launch"):
            hdr.append(f"; @launch grid=(256,1,1) block=(256,1,1) lds={LDS_BYTES}"); break
        hdr.append(ln)
    hdr += ['.amdgcn_target "amdgcn-amd-amdhsa--gfx950"', ".text", f".globl {KN}", ".p2align 8", f".type {KN},@function", f"{KN}:"]
    ftr = ['.section .rodata,"a"', ".p2align 6", f".amdhsa_kernel {KN}",
           "  .amdhsa_next_free_vgpr 512", "  .amdhsa_next_free_sgpr 102", "  .amdhsa_accum_offset 256",
           "  .amdhsa_group_segment_fixed_size 0", "  .amdhsa_kernarg_size 96", "  .amdhsa_user_sgpr_count 2",
           "  .amdhsa_user_sgpr_kernarg_segment_ptr 1", "  .amdhsa_system_sgpr_workgroup_id_x 1", ".end_amdhsa_kernel", ""]
    return "\n".join(hdr + g.o + ftr)

if __name__ == "__main__":
    opt = {}
    for a in sys.argv[2:]:
        k, v = a.split("="); opt[k] = v.split(",") if k == "stamp" else int(v)
    open(sys.argv[1], "w").write(gen(opt))
```

```python
import sys
KN = "standalone__deep_cross_wide_deep__recsys_kernel"
REF = "standalone__deep_cross_wide_deep__recsys.s.ref"

ODD_OFF = 0
EVEN_OFF = 65504
IDX_OFF = 131008
RED = 65504
LDS_BYTES = 163840

vWrO, vL, vG, vGx, vW1a, vW1b, vSel, vBW = 0, 1, 2, 3, 4, 5, 6, 7
vD = [8, 9, 10, 11]
vRW = [12, 13, 14]
vRR0 = 15
AD0 = 16
BLK0 = 48
NBLK = 8
OWN0 = 176
W2P = 208
XR = 224
T0 = 232
vRR1, vWide, vFlag, vAt, vPf, vClaim = 236, 237, 238, 239, 240, 241
vT1, vT2, vT3, vT4 = 242, 243, 244, 245
vZ0 = 246
vWrE, vAcc, vXs, vPB = 248, 249, 250, 251
EB = [96, 128]
C3A = 128
C2A = 192
B1A = 240
sIDX, sTAB, sW1 = 28, 32, 36
sX_, sWW, sBW, sB1, sW2, sB2, sOUT, sDBG, sWS = 8, 10, 12, 16, 18, 20, 22, 24, 26
sW, sNS, sMT, sK, sXO, sDM0, sDSO, s65, sT1, sT2, sT3, sRole, sD2, sD3, sMa, sMb, sPT, sPB, sWm = 3, 4, 5, 6, 7, 40, 41, 42, 43, 44, 45, 46, 47, 48, 49, 50, 51, 52, 53
sWWv = 64
ST0 = 80

def AD(f, a): return AD0 + 8 * a + f
def vr(b, n=4): return f"v[{b}:{b+n-1}]"
def ar(b, n=4): return f"a[{b}:{b+n-1}]"
def ACCB(a, t): return (a * 2 + t) * 16
def ACC(a, t): return ar(ACCB(a, t), 16) if a < 3 else vr(OWN0 + 16 * t, 16)
def off(x): return f" offset:{x}" if x else ""

class G:
    def __init__(s, opt):
        s.o = []; s.vm = 0; s.lg = 0; s.tags = {}; s.ltags = {}; s.opt = opt
        s.vdone = 0; s.ldone = 0
    def e(s, x): s.o.append("  " + x)
    def lab(s, x): s.o.append(x + ":")
    def vmem(s, x, tag=None):
        s.e(x); s.vm += 1
        if tag is not None: s.tags[tag] = s.vm
    def lds(s, x, tag=None):
        s.e(x); s.lg += 1
        if tag is not None: s.ltags[tag] = s.lg
    def mark(s, tag): s.tags[tag] = s.vm
    def waitvm(s, tag, force=False):
        t = s.tags[tag]
        if t <= s.vdone and not force: return
        n = min(s.vm - t, 63); s.vdone = max(s.vdone, s.vm - n)
        s.e(f"s_waitcnt vmcnt({n})")
    def waitl(s, tag):
        t = s.ltags[tag]
        if t <= s.ldone: return
        n = min(s.lg - t, 15); s.ldone = max(s.ldone, s.lg - n)
        s.e(f"s_waitcnt lgkmcnt({n})")
    def waitl0(s):
        s.ldone = s.lg; s.e("s_waitcnt lgkmcnt(0)")
    def stamp(s, name):
        L = s.opt.get("stamp")
        if L and name in L:
            i = 1 + L.index(name)
            s.e(f"s_memtime s[{ST0+2*i}:{ST0+2*i+1}]"); s.waitl0()

def stepinfo(s):
    h, r = divmod(s, 13)
    if r < 6: return (r, 2 * h)
    if r == 6: return (6, 2 * h)
    return (r - 7, 2 * h + 1)

def gen(opt):
    g = G(opt); e = g.e
    NS = 26; KT = 16 * 22; NK = 16 * NS
    def K(s, i): return 16 * s + i
    C0 = opt.get("c0", 13)
    bw0 = {}; bw1 = {}
    for n in range(1, C0): bw0[n] = 16 * (n - 1); bw1[n] = 16 * n - 2
    bw0[1] = opt.get("bw1", 5)
    span = KT - 2 - 16 * (C0 - 1)
    for n in range(C0, NS):
        bw0[n] = 16 * (C0 - 1) + ((n - C0) * span) // (NS - C0)
        bw1[n] = 16 * (C0 - 1) + ((n + 1 - C0) * span) // (NS - C0)
        assert bw1[n] <= 16 * n - 2
    rp = {}
    for s in range(0, 11):
        rp[s + 3] = [K(s, i) for i in ((1, 5, 9, 13) if s % 2 else (0, 5, 8, 13))]
    RD = opt.get("rd", 30)
    rp[14] = [K(11, i) for i in (3, 5, 7, 9)]
    prev = K(11, 9)
    for n in range(15, NS):
        st = max(bw0[n] - RD, prev + 2)
        rp[n] = [st, st + 3, st + 6, st + 9]; prev = st + 9
        assert prev < bw0[n] - 8, (n, prev, bw0[n])
    iv = []
    for n in range(NS):
        iv.append((("raw", n), rp[n][0] if n >= 3 else -1, bw1[n] - 1 if n else -1))
        iv.append((("F", n), bw0[n] if n else -2, 16 * n + 15 if n < 22 else NK))
    iv += [(("Q", 0), KT, NK), (("Q", 1), KT, NK), (("P", 0), KT + 24, NK), (("P", 1), KT + 24, NK)]
    iv.sort(key=lambda x: x[1])
    free = [-10] * NBLK; blk = {}
    for name, a, b in iv:
        c = [i for i in range(NBLK) if free[i] < a]
        assert c, (name, a, free)
        i = min(c, key=lambda i: free[i]); blk[name] = BLK0 + 16 * i; free[i] = b
    def RAW(s, kd): return blk[("raw", s)] + 4 * kd
    def F(s, j): return blk[("F", s)] + 4 * j
    Q = [blk[("Q", 0)], blk[("Q", 1)]]; P = [blk[("P", 0)], blk[("P", 1)]]

    def w1_load(s, kd):
        f, c = stepinfo(s)
        if kd == 0 or opt.get("soffall", 1):
            if f < 6: e(f"s_mov_b32 s{sK}, {f*131072 + c*32768}")
            else: e(f"s_add_u32 s{sK}, s{sXO}, {c*32768}")
        g.vmem(f"buffer_load_dwordx4 {vr(RAW(s, kd))}, v{vW1a if kd < 2 else vW1b}, s[{sW1}:{sW1+3}], s{sK} offen" + (" offset:2048" if kd & 1 else ""), tag=("raw", s, kd))
    def ereg(s, a, kh):
        if s < 22: return EB[0] + 8 * a + 4 * kh
        return EB[(a + 1) & 1] + 8 * (s - 22) + 4 * kh
    def e_read(s, a, kh):
        f, c = stepinfo(s)
        o = (0 if f == 6 else (EVEN_OFF if c % 2 == 0 else ODD_OFF)) + 16 * kh
        g.lds(f"ds_read_b128 {ar(ereg(s, a, kh))}, v{AD(f, a)}{off(o)}", tag=("E", s, a, kh))
    def xf_ops(s):
        ops = []
        def mv(kd, j):
            if j == 0: g.waitvm(("raw", s, kd))
            e(f"v_mov_b32_dpp v{T0 + j}, v{RAW(s, kd) + j} row_ror:8 row_mask:0xf bank_mask:0xf")
        def pm(kd, j): e(f"v_perm_b32 v{F(s, j) + kd}, v{T0 + j}, v{RAW(s, kd) + j}, v{vSel}")
        def sw(kd, t, nop=False):
            if nop: e("s_nop 1")
            e(f"v_permlane16_swap_b32 v{F(s, 2*t) + kd}, v{F(s, 2*t+1) + kd}")
        for kd in range(4):
            for j in range(4):
                ops.append(lambda kd=kd, j=j: mv(kd, j))
                if j == 3: ops.append(lambda kd=kd: sw(kd, 0))
                ops.append(lambda kd=kd, j=j: pm(kd, j))
                if j == 0 and kd > 0: ops.append(lambda kd=kd: sw(kd - 1, 1))
        ops.append(lambda: sw(3, 1, True))
        return ops

    e("s_cmp_ge_u32 s2, 256")
    e("s_cbranch_scc1 L_END")
    e(f"s_load_dwordx2 s[{sIDX}:{sIDX+1}], s[0:1], 0")
    e(f"s_load_dwordx2 s[{sTAB}:{sTAB+1}], s[0:1], 8")
    e(f"s_load_dwordx2 s[{sW1}:{sW1+1}], s[0:1], 40")
    e(f"s_load_dwordx4 s[16:19], s[0:1], 48")
    e(f"s_load_dwordx4 s[8:11], s[0:1], 16")
    e(f"s_load_dwordx2 s[12:13], s[0:1], 32")
    e(f"s_load_dwordx8 s[20:27], s[0:1], 64")
    if opt.get("stamp"):
        e(f"s_memrealtime s[{ST0+12}:{ST0+13}]")
        e(f"s_memtime s[{ST0}:{ST0+1}]")
        for i in range(1, 6): e(f"s_mov_b64 s[{ST0+2*i}:{ST0+2*i+1}], 0")
    e(f"v_lshrrev_b32 v{vT1}, 6, v0")
    e(f"v_and_b32 v{vL}, 63, v0")
    e(f"v_readfirstlane_b32 s{sW}, v{vT1}")
    e(f"s_and_b32 s{sNS}, s2, 7")
    e(f"s_lshr_b32 s{sMT}, s2, 3")
    e(f"s_mov_b32 s{sIDX+2}, 425984")
    e(f"s_mov_b32 s{sIDX+3}, 0x00020000")
    e(f"s_mov_b32 s{sTAB+2}, 256000")
    e(f"s_mov_b32 s{sTAB+3}, 0x00020000")
    e(f"s_mov_b32 s{sW1+2}, 3407872")
    e(f"s_mov_b32 s{sW1+3}, 0x00020000")
    e(f"s_mul_i32 s{sT1}, s{sW}, 3328")
    e(f"s_add_u32 m0, s{sT1}, {IDX_OFF}")
    e(f"s_mul_i32 s{sT2}, s{sMT}, 13312")
    e(f"s_add_u32 s{sT2}, s{sT2}, s{sT1}")
    e(f"v_lshlrev_b32 v{vT2}, 4, v{vL}")
    e(f"s_lshl_b32 s{sT3}, s{sNS}, 7")
    e(f"v_and_b32 v{vT3}, 7, v{vL}")
    e(f"v_lshlrev_b32 v{vXs}, 8, v{vT3}")
    e(f"s_lshl_b32 s{sPT}, s{sMT}, 13")
    e(f"s_lshl_b32 s{sD2}, s{sW}, 11")
    e(f"s_add_u32 s{sPT}, s{sPT}, s{sD2}")
    e(f"s_mul_i32 s{sMa}, s{sMT}, 24")
    e(f"s_mul_i32 s{sMb}, s{sW}, 6")
    e(f"s_add_u32 s{sMa}, s{sMa}, s{sMb}")
    e(f"v_min_u32 v{vT4}, 5, v{vL}")
    e(f"v_add_u32 v{vT4}, s{sMa}, v{vT4}")
    e(f"v_lshrrev_b32 v{vPB}, 5, v{vT4}")
    e(f"v_and_b32 v{vT4}, 31, v{vT4}")
    e(f"v_lshlrev_b32 v{vT4}, 10, v{vT4}")
    e(f"v_lshl_add_u32 v{vT4}, v{vPB}, 17, v{vT4}")
    e(f"v_lshrrev_b32 v{vT1}, 2, v{vL}")
    e(f"v_lshlrev_b32 v{vD[0]}, 8, v{vT1}")
    e(f"v_and_b32 v{vT1}, 3, v{vL}")
    e(f"v_lshl_add_u32 v{vD[0]}, v{vT1}, 4, v{vD[0]}")
    for j in range(1, 4): e(f"v_add_u32 v{vD[j]}, {j*3056}, v{vD[0]}")
    e(f"s_lshl_b32 s{sT1}, s{sW}, 4")
    e(f"s_min_u32 s{sT1}, s{sT1}, 47")
    e(f"s_mul_i32 s{sDM0}, s{sT1}, 1040")
    e(f"s_lshl_b32 s{sDSO}, s{sT1}, 12")
    e("s_waitcnt lgkmcnt(0)")
    g.stamp("karg")
    PF = opt.get("pf", 15)
    if PF & 1: g.vmem(f"buffer_load_dword v{vPf}, v{vXs}, s[{sTAB}:{sTAB+3}], s{sPT} offen")
    if PF & 2: g.vmem(f"buffer_load_dword v{vPf}, v{vT4}, s[{sW1}:{sW1+3}], s{sT3} offen")
    for j in range(4):
        if j == 3: e("s_mov_b64 exec, 0xffff")
        g.vmem(f"buffer_load_dwordx4 v{vT2}, s[{sIDX}:{sIDX+3}], s{sT2} offen{off(j*1024)} lds", tag="idx")
    e("s_mov_b64 exec, -1")
    e(f"s_load_dwordx4 s[{sWWv}:{sWWv+3}], s[{sWW}:{sWW+1}], 0")
    e(f"s_load_dwordx2 s[{sWWv+4}:{sWWv+5}], s[{sWW}:{sWW+1}], 16")
    e(f"s_load_dword s{sWWv+6}, s[{sWW}:{sWW+1}], 24")
    e(f"s_load_dword s{sWWv+7}, s[{sBW}:{sBW+1}], 0")
    e(f"s_load_dword s{sWWv+8}, s[{sB2}:{sB2+1}], 0")
    e(f"v_and_b32 v{vG}, 48, v{vL}")
    e(f"v_lshlrev_b32 v{vW1a}, 9, v{vG}")
    e(f"v_and_b32 v{vT1}, 8, v{vL}")
    e(f"v_lshl_add_u32 v{vW1a}, v{vT1}, 7, v{vW1a}")
    e(f"v_lshl_add_u32 v{vW1a}, v{vT3}, 4, v{vW1a}")
    e(f"s_mul_i32 s{sT1}, s{sW}, {6*131072}")
    e(f"s_add_u32 s{sT1}, s{sT1}, s{sT3}")
    e(f"v_add_u32 v{vW1a}, s{sT1}, v{vW1a}")
    e(f"v_add_u32 v{vW1b}, 4096, v{vW1a}")
    e(f"v_and_b32 v{vG}, 32, v{vL}")
    P01 = []
    for q in range(4):
        for jj in (0, 2):
            for c in (0, 1):
                for j in (jj, jj + 1):
                    def th(q=q, j=j, c=c, jj=jj):
                        if jj == 0 and c == 0 and j == 0:
                            e(f"s_add_u32 s{sMa}, s{sDM0}, {EVEN_OFF + q*4160}")
                            e(f"s_add_u32 s{sMb}, s{sDM0}, {ODD_OFF + q*4160}")
                            e(f"s_add_u32 s{sD2}, s{sDSO}, {q*16384}")
                            e(f"s_add_u32 s{sD3}, s{sDSO}, {q*16384 + 64}")
                        if j == jj:
                            e(f"s_mov_b32 m0, s{sMb if c else sMa}")
                            e("s_nop 0")
                        g.vmem(f"buffer_load_dwordx4 v{vD[j]}, s[{sTAB}:{sTAB+3}], s{sD3 if c else sD2} offen{off(j*1040)} lds", tag="p01")
                    P01.append(th)
    NP1 = opt.get("np1", 4)
    for th in P01[:NP1]: th()
    e(f"v_mov_b32 v{vSel}, 0x05040100")
    e(f"v_mov_b32 v{vT4}, 0x03020706")
    e(f"v_cmp_ne_u32 vcc, 0, v{vT1}")
    e(f"s_mov_b32 s{s65}, 65")
    e(f"s_cmp_lt_u32 s{sW}, 2")
    e(f"v_cndmask_b32 v{vSel}, v{vSel}, v{vT4}, vcc")
    e(f"s_cselect_b32 s{sT1}, {EVEN_OFF}, {ODD_OFF}")
    e(f"v_add_u32 v{vGx}, s{sT1}, v{vG}")
    e(f"v_min_u32 v{vPB}, 25, v{vL}")
    e(f"v_lshlrev_b32 v{vPB}, 10, v{vPB}")
    e(f"s_mul_i32 s{sPB}, s{sMT}, 104")
    e(f"s_mul_i32 s{sT1}, s{sW}, 26")
    e(f"s_add_u32 s{sPB}, s{sPB}, s{sT1}")
    e(f"s_lshl_b32 s{sPB}, s{sPB}, 10")
    e(f"s_add_u32 s{sPB}, s{sPB}, s{sT3}")
    e(f"v_lshlrev_b32 v{vBW}, 1, v{vG}")
    e(f"v_add_u32 v{vBW}, s{sT3}, v{vBW}")
    e(f"s_and_b32 s{sT1}, s{sW}, 1")
    e(f"s_add_u32 s{sT1}, s{sT1}, 24")
    e(f"s_mul_i32 s{sXO}, s{sW}, 6")
    e(f"s_sub_u32 s{sXO}, s{sT1}, s{sXO}")
    e(f"s_lshl_b32 s{sT3}, s{sXO}, 2")
    e(f"s_lshl_b32 s{sXO}, s{sXO}, 17")
    e(f"s_lshr_b32 s{sT1}, s{sW}, 1")
    e(f"s_lshl_b32 s{sT1}, s{sT1}, 15")
    e(f"s_add_u32 s{sXO}, s{sXO}, s{sT1}")
    e(f"v_and_b32 v{vT4}, 31, v{vL}")
    e(f"v_mul_u32_u24 v{vT1}, 104, v{vT4}")
    e(f"s_mul_i32 s{sT1}, s{sW}, 24")
    e(f"s_add_u32 s{sT1}, s{sT1}, {IDX_OFF}")
    e(f"v_add_u32 v{vT1}, s{sT1}, v{vT1}")
    for a in range(4):
        e(f"s_add_u32 s{sT1}, s{sW}, {a+1}")
        e(f"s_and_b32 s{sT1}, s{sT1}, 3")
        e(f"s_mul_i32 s{sT2}, s{sT1}, 3328")
        e(f"v_add_u32 v{XR+a}, s{sT2}, v{vT1}")
        if a < 3:
            e(f"s_lshl_b32 s{sT1}, s{sT1}, 13")
            e(f"s_add_u32 s{sT1}, s{sT1}, {RED + a*32768}")
            e(f"v_add_u32 v{vRW[a]}, s{sT1}, v{vT2}")
    e(f"s_lshl_b32 s{sT1}, s{sW}, 13")
    e(f"s_add_u32 s{sT1}, s{sT1}, {RED}")
    e(f"v_add_u32 v{vRR0}, s{sT1}, v{vT2}")
    e(f"v_add_u32 v{vRR1}, 0x10000, v{vRR0}")
    for a in range(4): e(f"v_add_u32 v{W2P+a}, s{sT3}, v{XR+a}")
    e(f"v_add_u32 v{vWrO}, s{sDM0}, v{vT2}")
    e(f"v_add_u32 v{vWrE}, {EVEN_OFF}, v{vWrO}")
    e(f"s_lshl_b32 s{sT1}, s{sMT}, 7")
    e(f"s_lshl_b32 s{sT2}, s{sW}, 5")
    e(f"s_add_u32 s{sT1}, s{sT1}, s{sT2}")
    e(f"v_add_u32 v{vT4}, s{sT1}, v{vT4}")
    e(f"v_lshlrev_b32 v{vAt}, 3, v{vT4}")
    e(f"v_mov_b32 v{vZ0}, 0")
    e(f"v_mov_b32 v{vZ0+1}, 0")
    e(f"s_or_b32 s{sT1}, s{sNS}, s{sW}")
    e(f"s_cmp_eq_u32 s{sT1}, 0")
    e(f"s_cselect_b32 s{sRole}, 1, 0")
    e(f"s_cmp_eq_u32 s{sNS}, 0")
    e(f"s_cselect_b32 s{sWm}, -1, 0")
    g.stamp("iss")
    g.waitvm("idx")
    e("s_barrier")
    g.stamp("idx")
    for a in range(4):
        b = AD0 + 8 * a
        e(f"ds_read2_b64 {vr(b)}, v{XR+a} offset0:0 offset1:1")
        e(f"ds_read_b64 {vr(b+4,2)}, v{XR+a} offset:16")
        e(f"ds_read_b32 v{b+6}, v{W2P+a}")
    NP2 = opt.get("np2", 8)
    for th in P01[NP1:NP2]: th()
    g.waitl0()
    g.stamp("lidx")
    V = []
    for f in range(7):
        for a in range(4):
            V.append(lambda f=f, a=a: e(f"v_mad_u32_u24 v{AD(f,a)}, v{AD(f,a)}, s{s65}, v{vGx if f == 6 else vG}"))
        for a in range(4):
            V.append(lambda f=f, a=a: e(f"v_and_b32 v{AD(f,a)}, -16, v{AD(f,a)}"))
    R0P = opt.get("r0p", 12)
    M = P01[NP2:R0P] + [lambda kd=kd: w1_load(0, kd) for kd in range(4)] + P01[R0P:] + [lambda s=s, kd=kd: w1_load(s, kd) for s in (1, 2) for kd in range(4)]
    per = 4
    vi = 0
    for th in M:
        th()
        for fn in V[vi:vi + per]: fn()
        vi += per
    for fn in V[vi:]: fn()
    for fn in xf_ops(0): fn()
    g.stamp("f0")
    g.waitvm("p01")
    e("s_barrier")
    g.stamp("p01")

    mf = []
    for s in range(22):
        for a in range(4):
            for kh in range(2):
                for t in range(2): mf.append((s, a, t, kh))
    for a in range(4):
        for t in range(2):
            for s in range(22, 26):
                for kh in range(2): mf.append((s, a, t, kh))
    pre = [[] for _ in range(NK + 1)]
    post = [[] for _ in range(NK)]
    for a in range(4):
        for kh in range(2): e_read(0, a, kh)
    g.stamp("s0")
    BAR12 = opt.get("bar12", 4)
    for k, (s, a, t, kh) in enumerate(mf):
        if t == 0: pre[k].append(lambda s=s, a=a, kh=kh: g.waitl(("E", s, a, kh)))
    pre[K(7, 0)].append(lambda: e("s_barrier"))
    def bar12():
        g.waitvm("c2dma"); g.waitl(("tw", 2)); g.waitl(("E", 12, 3, 1)); e("s_barrier")
    pre[K(12, BAR12)].append(bar12)
    def bar18():
        g.waitl(("tw", 3)); e("s_barrier")
    pre[K(18, 1)].append(bar18)
    pre[K(21, 0)].append(lambda: e("s_barrier"))
    for s in range(1, 22):
        for a in range(4):
            for kh in range(2):
                pos = K(s - 1, 4 * a + 2 * kh + 1)
                if s == 13 and pos < K(12, BAR12): pos = K(12, BAR12)
                post[pos].append(lambda s=s, a=a, kh=kh: e_read(s, a, kh))
    for a in range(4):
        for i in range(8):
            post[KT + 16 * (a - 1) + 2 * i + (1 if a == 0 else 0)].append(lambda a=a, i=i: e_read(22 + (i >> 1), a, i & 1))
    for n in range(1, NS):
        ops = xf_ops(n)
        for i, fn in enumerate(ops):
            post[bw0[n] + (i * (bw1[n] - bw0[n])) // len(ops)].append(fn)
    NC2A = 9
    def t_load(p, c):
        q, j = p >> 2, p & 3
        if c == 2: e(f"s_add_u32 s{sD2}, s{sDSO}, {q*16384 + 128}")
        if c == 2 and p >= NC2A:
            e(f"s_add_u32 m0, s{sDM0}, {EVEN_OFF + q*4160}")
            e("s_nop 0")
            g.vmem(f"buffer_load_dwordx4 v{vD[j]}, s[{sTAB}:{sTAB+3}], s{sD2} offen{off(j*1040)} lds", tag="c2dma")
        else:
            r = (C2A if c == 2 else C3A) + 4 * p
            g.vmem(f"buffer_load_dwordx4 {ar(r)}, v{vD[j]}, s[{sTAB}:{sTAB+3}], s{sD2} offen{off(j*1040 + (64 if c == 3 else 0))}", tag=("t", p, c))
    def t_write(p, c):
        g.waitvm(("t", p, c))
        r = (C2A if c == 2 else C3A) + 4 * p
        g.lds(f"ds_write_b128 v{vWrE if c == 2 else vWrO}, {ar(r)}{off(p*1040)}", tag=("tw", c))
    for n in range(3, NS):
        for kd in range(4): post[rp[n][kd]].append(lambda n=n, kd=kd: w1_load(n, kd))
    tp = []
    for s in range(1, 11): tp += [K(s, 3), K(s, 11)] if s % 2 else [K(s, 10)]
    tp.append(K(11, 1))
    assert len(tp) == 16 and tp[NC2A - 1] < K(7, 0) <= tp[NC2A]
    TS = opt.get("ts", 0)
    for p in range(16):
        post[tp[p]].append(lambda p=p: t_load(p, 2))
        post[tp[p] + TS].append(lambda p=p: t_load(p, 3))
    if PF & 4: post[K(0, 2)].append(lambda: g.vmem(f"buffer_load_dword v{vPf}, v{vXs}, s[{sTAB}:{sTAB+3}], s{sPT} offen offset:128"))
    if PF & 8: post[K(0, 3)].append(lambda: g.vmem(f"buffer_load_dword v{vPf}, v{vPB}, s[{sW1}:{sW1+3}], s{sPB} offen"))
    wl = [(7, 4), (7, 12), (8, 4), (8, 12), (9, 4), (9, 12), (10, 4), (10, 12), (11, 4)]
    for p in range(NC2A): post[K(*wl[p])].append(lambda p=p: t_write(p, 2))
    wl = [(12, 7), (12, 11), (12, 15)] + [(s, i) for s in range(13, 17) for i in (3, 7, 11)] + [(17, 3)]
    for p in range(16): post[K(*wl[p])].append(lambda p=p: t_write(p, 3))
    def guard(fn):
        def w():
            a, b = g.vdone, g.ldone
            fn()
            g.vdone, g.ldone = a, b
        return w
    def claim():
        e(f"s_cmp_eq_u32 s{sRole}, 0")
        e("s_cbranch_scc1 L_NOC")
        e(f"s_lshl_b32 s{sT1}, s{sMT}, 2")
        e(f"v_mov_b32 v{vT2}, s{sT1}")
        e(f"v_mov_b32 v{vClaim}, 1")
        e("s_mov_b64 exec, 1")
        e(f"global_atomic_add v{vClaim}, v{vT2}, v{vClaim}, s[{sDBG}:{sDBG+1}] sc0 sc1")
        e("s_mov_b64 exec, -1")
        g.lab("L_NOC")
        g.mark("claim")
    post[K(0, 14)].append(claim)
    def swap():
        e(f"s_cmp_eq_u32 s{sRole}, 0")
        e("s_cbranch_scc1 L_NOW")
        g.waitvm("claim", force=True)
        e(f"v_readfirstlane_b32 s{sT1}, v{vClaim}")
        e(f"s_cmp_lg_u32 s{sT1}, 0")
        e(f"s_cselect_b32 s{sRole}, 0, 1")
        e("s_cbranch_scc1 L_NOW")
        e(f"s_lshl_b32 s{sT1}, s{sMT}, 10")
        e(f"v_lshlrev_b32 v{vT2}, 3, v{vL}")
        e(f"v_add_u32 v{vT2}, s{sT1}, v{vT2}")
        e(f"global_atomic_swap_x2 {vr(XR,2)}, v{vT2}, {vr(vZ0,2)}, s[{sWS}:{sWS+1}] sc0 sc1")
        e(f"global_atomic_swap_x2 {vr(XR+2,2)}, v{vT2}, {vr(vZ0,2)}, s[{sWS}:{sWS+1}] offset:512 sc0 sc1")
        g.lab("L_NOW")
        g.mark("swap")
    post[K(4, 14)].append(guard(swap))
    def flag():
        e(f"s_cmp_eq_u32 s{sRole}, 0")
        e("s_cbranch_scc1 L_NOF")
        g.waitvm("swap", force=True)
        e(f"s_lshl_b32 s{sT1}, s{sMT}, 2")
        e(f"v_mov_b32 v{vT2}, s{sT1}")
        e(f"v_mov_b32 v{vT3}, 1")
        e("s_mov_b64 exec, 1")
        e(f"global_store_dword v{vT2}, v{vT3}, s[{sDBG}:{sDBG+1}] offset:128 sc0 sc1")
        e("s_mov_b64 exec, -1")
        g.lab("L_NOF")
    post[K(9, 14)].append(guard(flag))
    for r in range(4):
        post[K(19, 2 + 4 * r)].append(lambda r=r: g.vmem(f"global_load_dwordx4 {ar(B1A+4*r)}, v{vBW}, s[{sB1}:{sB1+1}]{off(16*r)}", tag="b1"))
        post[K(20, 2 + 4 * r)].append(lambda r=r: g.vmem(f"global_load_dwordx4 {vr(W2P+4*r)}, v{vBW}, s[{sW2}:{sW2+1}]{off(16*r)}", tag="w2"))
    def xload():
        e(f"v_lshrrev_b32 v{vT2}, 3, v{vAt}")
        e(f"v_mul_u32_u24 v{vT2}, 26, v{vT2}")
        e(f"v_and_b32 v{vT2}, -4, v{vT2}")
        g.vmem(f"global_load_dwordx4 {vr(XR)}, v{vT2}, s[{sX_}:{sX_+1}]")
        g.vmem(f"global_load_dwordx3 {vr(XR+4,3)}, v{vT2}, s[{sX_}:{sX_+1}] offset:16", tag="x")
    post[K(19, 0)].append(xload)
    def rdflag():
        e(f"s_lshl_b32 s{sT1}, s{sMT}, 2")
        e(f"v_mov_b32 v{vT3}, s{sT1}")
        g.vmem(f"global_load_dword v{vFlag}, v{vT3}, s[{sDBG}:{sDBG+1}] offset:128 sc1", tag="flag")
    post[K(23, 3)].append(rdflag)
    def spread(ops, k0, k1):
        for i, fn in enumerate(ops): post[k0 + (i * (k1 - k0)) // len(ops)].append(fn)
    ops = [lambda: g.waitvm("b1")]
    for t in range(2):
        for r in (0, 1, 2, 3, 8, 9, 10, 11):
            d = 4 * (r & 3) + 2 * t + (r >> 3)
            ops.append(lambda t=t, r=r, d=d: e(f"v_accvgpr_read_b32 v{Q[t]+r+4}, a{B1A+d}"))
            ops.append(lambda t=t, r=r: e(f"v_lshlrev_b32 v{Q[t]+r}, 16, v{Q[t]+r+4}"))
            ops.append(lambda t=t, r=r: e(f"v_and_b32 v{Q[t]+r+4}, 0xffff0000, v{Q[t]+r+4}"))
    spread(ops, KT, KT + 16)
    XX = [XR + i for i in range(7)]
    ops = [lambda: g.waitvm("x"),
           lambda: e(f"v_and_b32 v{vXs}, 1, v{vL}"), lambda: e(f"v_lshlrev_b32 v{vXs}, 4, v{vXs}"),
           lambda: e(f"s_lshl_b32 s{sT1}, s{sWWv+7}, 16"), lambda: e(f"s_lshl_b32 s{sT2}, s{sWWv+8}, 16"),
           lambda: e(f"v_mov_b32 v{vWide}, s{sT1}"), lambda: e(f"v_add_f32 v{vWide}, s{sT2}, v{vWide}"),
           lambda: e(f"s_and_b32 s{sWWv+6}, s{sWWv+6}, 0xffff")]
    for i in range(6): ops.append(lambda i=i: e(f"v_alignbit_b32 v{XX[i]}, v{XX[i+1]}, v{XX[i]}, v{vXs}"))
    ops.append(lambda: e(f"v_bfe_u32 v{XX[6]}, v{XX[6]}, v{vXs}, 16"))
    for i in range(7): ops.append(lambda i=i: e(f"v_dot2_f32_bf16 v{vWide}, v{XX[i]}, s{sWWv+i}, v{vWide}"))
    spread(ops, KT + 16, KT + 26)
    post[KT + 30].append(lambda: e(f"v_and_b32 v{vAcc}, s{sWm}, v{vWide}"))
    post[KT + 31].append(lambda: e(f"v_mul_f32 v{vAcc}, 0.5, v{vAcc}"))
    for c in range(6):
        a, t = c >> 1, c & 1
        for i in range(4):
            post[KT + 8 * c + 9 + i].append(lambda a=a, t=t, i=i, c=c: g.lds(f"ds_write_b128 v{vRW[a]}, {ar(ACCB(a,t)+4*i)}{off((4*t+i)*1024)}", tag=("rw", c)))
    def rbar(c):
        def f(): g.waitl(("rw", c)); e("s_barrier")
        return f
    def rread(c, k0):
        a, t = c >> 1, c & 1
        for i in range(4):
            base, o = (vRR0, a * 32768 + (4*t+i) * 1024) if a < 2 else (vRR1, (4*t+i) * 1024)
            post[k0 + i].append(lambda i=i, base=base, o=o, t=t, c=c: g.lds(f"ds_read_b128 {vr(P[t]+4*i)}, v{base}{off(o)}", tag=("rr", c, i)))
    def radd(c, k0, k1):
        t = c & 1; ops = []
        for i in range(4):
            for hh in (0, 2):
                def f(i=i, hh=hh):
                    g.waitl(("rr", c, i))
                    e(f"v_pk_add_f32 {vr(Q[t]+4*i+hh,2)}, {vr(Q[t]+4*i+hh,2)}, {vr(P[t]+4*i+hh,2)}")
                ops.append(f)
        spread(ops, k0, k1)
    pre[KT + 24].append(rbar(1)); rread(0, KT + 24); rread(1, KT + 28); radd(0, KT + 32, KT + 36); radd(1, KT + 36, KT + 40)
    pre[KT + 40].append(rbar(3)); rread(2, KT + 40); rread(3, KT + 44); radd(2, KT + 45, KT + 48)
    pre[KT + 48].append(rbar(4)); rread(4, KT + 48); radd(3, KT + 50, KT + 53); radd(4, KT + 53, KT + 56)
    pre[KT + 56].append(rbar(5)); rread(5, KT + 56); radd(5, KT + 61, KT + 64)
    def fin(t):
        ops = []; h = OWN0 + 16 * t
        for i in range(0, 16, 2): ops.append(lambda i=i: e(f"v_pk_add_f32 {vr(h+i,2)}, {vr(h+i,2)}, {vr(Q[t]+i,2)}"))
        R = (0, 1, 2, 3, 8, 9, 10, 11)
        for r in R: ops.append(lambda r=r: e(f"v_cvt_pk_bf16_f32 v{h+r}, v{h+r}, v{h+r+4}"))
        for r in R: ops.append(lambda r=r: e(f"v_pk_max_i16 v{h+r}, v{h+r}, 0"))
        for r in R: ops.append(lambda r=r: e(f"v_dot2_f32_bf16 v{vAcc}, v{h+r}, v{W2P + 4*(r&3) + 2*t + (r>>3)}, v{vAcc}"))
        return ops
    post[KT + 57].append(lambda: g.waitvm("w2"))
    spread(fin(0), KT + 57, KT + 64)
    post[KT + 62].append(lambda: (g.waitvm("flag"), e(f"v_readfirstlane_b32 s{sT1}, v{vFlag}"), e(f"s_mov_b32 s{sT2}, 0x49000000"), e(f"s_mov_b32 s{sT3}, 0xc9000000")))
    for k, (s, a, t, kh) in enumerate(mf):
        for fn in pre[k]: fn()
        c = "0" if (s == 0 and kh == 0) else ACC(a, t)
        e(f"v_mfma_f32_32x32x16_bf16 {ACC(a,t)}, {vr(F(s, 2*t+kh))}, {ar(ereg(s, a, kh))}, {c}")
        n0 = len(g.o)
        for fn in post[k]: fn()
        if k % 16 == 15: g.stamp(f"s{k//16+1}")
    n = len(g.o) - n0
    if n < 12: e(f"s_nop {11 - n}")
    for fn in fin(1): fn()
    e(f"s_cmp_eq_u32 s{sT1}, 0")
    e("s_nop 1")
    e(f"v_mov_b32 v{vT1}, v{vAcc}")
    e(f"v_mov_b32 v{vT2}, v{vAcc}")
    e("s_nop 1")
    e(f"v_permlane32_swap_b32 v{vT1}, v{vT2}")
    e(f"v_add_f32 v{vT1}, v{vT1}, v{vT2}")
    e(f"v_min_f32 v{vT1}, s{sT2}, v{vT1}")
    e(f"v_max_f32 v{vT1}, s{sT3}, v{vT1}")
    e(f"v_floor_f32 v{vT2}, v{vT1}")
    e(f"v_sub_f32 v{vT3}, v{vT1}, v{vT2}")
    e(f"v_cvt_i32_f32 v{T0+1}, v{vT2}")
    e(f"v_mul_f32 v{vT3}, 0x4f800000, v{vT3}")
    e(f"v_add_u32 v{T0+1}, 0x1000000, v{T0+1}")
    e(f"v_cvt_u32_f32 v{T0}, v{vT3}")
    g.stamp("red")
    e("s_cbranch_scc1 L_SLOW")
    g.lab("L_GO")
    e("s_mov_b32 exec_lo, -1")
    e("s_mov_b32 exec_hi, 0")
    e(f"global_atomic_add_x2 {vr(T0+2,2)}, v{vAt}, {vr(T0,2)}, s[{sWS}:{sWS+1}] sc0 sc1")
    e(f"v_lshrrev_b32 v{vAt}, 2, v{vAt}")
    e("s_waitcnt vmcnt(0)")
    g.stamp("atom")
    e(f"v_add_co_u32 v{T0}, vcc, v{T0}, v{T0+2}")
    e(f"v_add_u32 v{vT1}, 0x800000, v{T0+3}")
    e(f"v_lshrrev_b32 v{vT1}, 24, v{vT1}")
    e(f"v_addc_co_u32 v{T0+1}, vcc, v{T0+1}, v{T0+3}, vcc")
    e(f"v_cmp_eq_u32 vcc, 7, v{vT1}")
    e(f"v_cvt_f32_u32 v{T0}, v{T0}")
    e(f"v_subrev_u32 v{T0+1}, 0x8000000, v{T0+1}")
    e(f"v_cvt_f32_i32 v{T0+1}, v{T0+1}")
    e("s_and_b64 exec, exec, vcc")
    e("s_cbranch_execz L_FIN")
    e(f"v_fmac_f32 v{T0+1}, 0x2f800000, v{T0}")
    e(f"v_mul_f32 v{T0+1}, 0xbfb8aa3b, v{T0+1}")
    e(f"v_exp_f32 v{T0+1}, v{T0+1}")
    e("s_nop 0")
    e(f"v_add_f32 v{T0+1}, 1.0, v{T0+1}")
    e(f"v_rcp_f32 v{T0+1}, v{T0+1}")
    e("s_nop 0")
    e(f"v_cvt_pk_bf16_f32 v{T0+1}, v{T0+1}, v{T0+1}")
    e(f"global_store_short v{vAt}, v{T0+1}, s[{sOUT}:{sOUT+1}]")
    g.lab("L_FIN")
    if opt.get("stamp"):
        e("s_mov_b64 exec, -1")
        e(f"s_memrealtime s[{ST0+14}:{ST0+15}]")
        e("s_waitcnt lgkmcnt(0)")
        e(f"s_cmp_lg_u32 s{sW}, 0")
        e("s_cbranch_scc1 L_END")
        e("s_mov_b64 exec, 1")
        e("s_lshl_b32 s3, s2, 6")
        e("s_add_u32 s3, s3, 0x200000")
        e("v_mov_b32 v2, s3")
        for i in range(16): e(f"v_mov_b32 v{4+i}, s{ST0+i}")
        for i in range(4): e(f"global_store_dwordx4 v2, v[{4+4*i}:{7+4*i}], s[{sWS}:{sWS+1}] offset:{16*i}")
    g.lab("L_END")
    e("s_endpgm")
    g.lab("L_SLOW")
    e(f"s_lshl_b32 s{sT1}, s{sMT}, 2")
    e(f"v_mov_b32 v{vT2}, s{sT1}")
    e(f"v_mov_b32 v{vClaim}, 1")
    e("s_mov_b64 exec, 1")
    e(f"global_atomic_add v{vClaim}, v{vT2}, v{vClaim}, s[{sDBG}:{sDBG+1}] sc0 sc1")
    e("s_waitcnt vmcnt(0)")
    e(f"v_readfirstlane_b32 s{sT1}, v{vClaim}")
    e(f"s_cmp_lg_u32 s{sT1}, 0")
    e("s_cbranch_scc1 L_SPIN")
    e("s_mov_b64 exec, -1")
    e(f"s_lshl_b32 s{sT1}, s{sMT}, 10")
    e(f"v_lshlrev_b32 v{vT3}, 3, v{vL}")
    e(f"v_add_u32 v{vT3}, s{sT1}, v{vT3}")
    e(f"global_atomic_swap_x2 {vr(XR,2)}, v{vT3}, {vr(vZ0,2)}, s[{sWS}:{sWS+1}] sc0 sc1")
    e(f"global_atomic_swap_x2 {vr(XR+2,2)}, v{vT3}, {vr(vZ0,2)}, s[{sWS}:{sWS+1}] offset:512 sc0 sc1")
    e(f"v_mov_b32 v{vT3}, 1")
    e("s_waitcnt vmcnt(0)")
    e("s_mov_b64 exec, 1")
    e(f"global_store_dword v{vT2}, v{vT3}, s[{sDBG}:{sDBG+1}] offset:128 sc0 sc1")
    e("s_branch L_GO")
    g.lab("L_SPIN")
    e(f"global_atomic_or v{vClaim}, v{vT2}, v{vZ0}, s[{sDBG}:{sDBG+1}] offset:128 sc0 sc1")
    e("s_waitcnt vmcnt(0)")
    e(f"v_readfirstlane_b32 s{sT1}, v{vClaim}")
    e(f"s_cmp_lg_u32 s{sT1}, 0")
    e("s_cbranch_scc1 L_GO")
    e("s_sleep 8")
    e("s_branch L_SPIN")

    ref = open(REF).read().split("\n")
    hdr = []
    for ln in ref:
        if ln.startswith("; @launch"):
            hdr.append(f"; @launch grid=(256,1,1) block=(256,1,1) lds={LDS_BYTES}"); break
        hdr.append(ln)
    hdr += ['.amdgcn_target "amdgcn-amd-amdhsa--gfx950"', ".text", f".globl {KN}", ".p2align 8", f".type {KN},@function", f"{KN}:"]
    ftr = ['.section .rodata,"a"', ".p2align 6", f".amdhsa_kernel {KN}",
           "  .amdhsa_next_free_vgpr 512", "  .amdhsa_next_free_sgpr 102", "  .amdhsa_accum_offset 256",
           "  .amdhsa_group_segment_fixed_size 0", "  .amdhsa_kernarg_size 96", "  .amdhsa_user_sgpr_count 2",
           "  .amdhsa_user_sgpr_kernarg_segment_ptr 1", "  .amdhsa_system_sgpr_workgroup_id_x 1", ".end_amdhsa_kernel", ""]
    return "\n".join(hdr + g.o + ftr)

if __name__ == "__main__":
    opt = {}
    for a in sys.argv[2:]:
        k, v = a.split("="); opt[k] = v.split(",") if k == "stamp" else int(v)
    open(sys.argv[1], "w").write(gen(opt))
```

```python
import sys
KN = "standalone__deep_cross_wide_deep__recsys_kernel"
REF = "standalone__deep_cross_wide_deep__recsys.s.ref"

ODD_OFF = 0
EVEN_OFF = 65504
IDX_OFF = 131008
RED = 65504
LDS_BYTES = 163840

vWrO, vL, vG, vGx, vW1a, vW1b, vSel, vBW = 0, 1, 2, 3, 4, 5, 6, 7
vD = [8, 9, 10, 11]
vRW = [12, 13, 14]
vRR0 = 15
AD0 = 16
BLK0 = 48
NBLK = 8
OWN0 = 176
W2P = 208
XR = 224
T0 = 232
vRR1, vWide, vFlag, vAt, vPf, vClaim = 236, 237, 238, 239, 240, 241
vT1, vT2, vT3, vT4 = 242, 243, 244, 245
vZ0 = 246
vWrE, vAcc, vXs, vPB = 248, 249, 250, 251
EB = [96, 128]
C3A = 128
C2A = 192
B1A = 240
sIDX, sTAB, sW1 = 28, 32, 36
sX_, sWW, sBW, sB1, sW2, sB2, sOUT, sDBG, sWS = 8, 10, 12, 16, 18, 20, 22, 24, 26
sW, sNS, sMT, sK, sXO, sDM0, sDSO, s65, sT1, sT2, sT3, sRole, sD2, sD3, sMa, sMb, sPT, sPB, sWm = 3, 4, 5, 6, 7, 40, 41, 42, 43, 44, 45, 46, 47, 48, 49, 50, 51, 52, 53
sWWv = 64
sSel0, sSel1 = 54, 55
vW1 = [4, 5, 232, 233]
ST0 = 80

def AD(f, a): return AD0 + 8 * a + f
def vr(b, n=4): return f"v[{b}:{b+n-1}]"
def ar(b, n=4): return f"a[{b}:{b+n-1}]"
def ACCB(a, t): return (a * 2 + t) * 16
def ACC(a, t): return ar(ACCB(a, t), 16) if a < 3 else vr(OWN0 + 16 * t, 16)
def DI(t, r): return 4 * (r & 3) + 2 * t + (r >> 3)
def LI(r): return 8 * ((r >> 2) & 1) + 2 * (r & 3) + (r >> 3)
def off(x): return f" offset:{x}" if x else ""

class G:
    def __init__(s, opt):
        s.o = []; s.vm = 0; s.lg = 0; s.tags = {}; s.ltags = {}; s.opt = opt
        s.vdone = 0; s.ldone = 0
    def e(s, x): s.o.append("  " + x)
    def lab(s, x): s.o.append(x + ":")
    def vmem(s, x, tag=None):
        s.e(x); s.vm += 1
        if tag is not None: s.tags[tag] = s.vm
    def lds(s, x, tag=None):
        s.e(x); s.lg += 1
        if tag is not None: s.ltags[tag] = s.lg
    def mark(s, tag): s.tags[tag] = s.vm
    def waitvm(s, tag, force=False):
        t = s.tags[tag]
        if t <= s.vdone and not force: return
        n = min(s.vm - t, 63); s.vdone = max(s.vdone, s.vm - n)
        s.e(f"s_waitcnt vmcnt({n})")
    def waitl(s, tag):
        t = s.ltags[tag]
        if t <= s.ldone: return
        n = min(s.lg - t, 15); s.ldone = max(s.ldone, s.lg - n)
        s.e(f"s_waitcnt lgkmcnt({n})")
    def waitl0(s):
        s.ldone = s.lg; s.e("s_waitcnt lgkmcnt(0)")
    def stamp(s, name):
        L = s.opt.get("stamp")
        if L and name in L:
            i = 1 + L.index(name)
            s.e(f"s_memtime s[{ST0+2*i}:{ST0+2*i+1}]"); s.waitl0()

def stepinfo(s):
    h, r = divmod(s, 13)
    if r < 6: return (r, 2 * h)
    if r == 6: return (6, 2 * h)
    return (r - 7, 2 * h + 1)

def gen(opt):
    g = G(opt); e = g.e
    NS = 26; KT = 16 * 22; NK = 16 * NS
    def K(s, i): return 16 * s + i
    C0 = opt.get("c0", 13)
    bw0 = {}; bw1 = {}
    for n in range(1, C0): bw0[n] = 16 * (n - 1); bw1[n] = 16 * n - 2
    bw0[1] = opt.get("bw1", 5)
    span = KT - 2 - 16 * (C0 - 1)
    for n in range(C0, NS):
        bw0[n] = 16 * (C0 - 1) + ((n - C0) * span) // (NS - C0)
        bw1[n] = 16 * (C0 - 1) + ((n + 1 - C0) * span) // (NS - C0)
        assert bw1[n] <= 16 * n - 2
    rp = {}
    NL = 4
    for s in range(0, 11): rp[s + 3] = [K(s, 4 * i) for i in range(NL)]
    RD = opt.get("rd", 30)
    prev = K(10, 15)
    for n in range(14, NS):
        st = max(bw0[n] - RD, prev + 1)
        ln = bw1[n] - bw0[n]
        rp[n] = [st + (i * ln) // NL for i in range(NL)]; prev = rp[n][-1]
        assert prev < bw0[n] - 4, (n, prev, bw0[n])
    iv = []
    for n in range(NS):
        iv.append((("raw", n), rp[n][0] if n >= 3 else -1, bw1[n] - 1 if n else -1))
        iv.append((("F", n), bw0[n] if n else -2, 16 * n + 15 if n < 22 else NK))
    iv += [(("P", 0), KT + 24, NK), (("P", 1), KT + 24, NK)]
    iv.sort(key=lambda x: x[1])
    free = [-10] * NBLK; blk = {}
    for name, a, b in iv:
        c = [i for i in range(NBLK) if free[i] < a]
        assert c, (name, a, free)
        i = min(c, key=lambda i: free[i]); blk[name] = BLK0 + 16 * i; free[i] = b
    def RAW(s, i): return blk[("raw", s)] + 4 * i
    def F(s, j): return blk[("F", s)] + 4 * j
    P = [blk[("P", 0)], blk[("P", 1)]]

    def w1_load(s, i):
        f, c = stepinfo(s)
        if i == 0:
            if f < 6: e(f"s_mov_b32 s{sK}, {f*131072 + c*32768}")
            else: e(f"s_add_u32 s{sK}, s{sXO}, {c*32768}")
        g.vmem(f"buffer_load_dwordx4 {vr(RAW(s, i))}, v{vW1[i >> 1]}, s[{sW1}:{sW1+3}], s{sK} offen{off((i & 1) * 2048)}", tag=("raw", s, i))
    def ereg(s, a, kh):
        if s < 22: return EB[0] + 8 * a + 4 * kh
        return EB[(a + 1) & 1] + 8 * (s - 22) + 4 * kh
    def e_read(s, a, kh):
        f, c = stepinfo(s)
        o = (0 if f == 6 else (EVEN_OFF if c % 2 == 0 else ODD_OFF)) + 16 * kh
        if opt.get("xN") and s > 0:
            g.ltags[("E", s, a, kh)] = g.ldone; return
        g.lds(f"ds_read_b128 {ar(ereg(s, a, kh))}, v{AD(f, a)}{off(o)}", tag=("E", s, a, kh))
    WG = opt.get("wg", 2)
    def xf_ops(s):
        ops = []
        def mv(kd, j):
            if j == 0 and kd % WG == 0: g.waitvm(("raw", s, kd + WG - 1))
            e(f"v_mov_b32_dpp v{T0 + j}, v{RAW(s, kd) + j} row_ror:8 row_mask:0xf bank_mask:0xf")
        def pm(kd, j): e(f"v_perm_b32 v{F(s, j) + kd}, v{T0 + j}, v{RAW(s, kd) + j}, v{vSel}")
        def sw(kd, t, nop=False):
            if nop: e("s_nop 1")
            e(f"v_permlane16_swap_b32 v{F(s, 2*t) + kd}, v{F(s, 2*t+1) + kd}")
        for kd in range(4):
            for j in range(4):
                ops.append(lambda kd=kd, j=j: mv(kd, j))
                if j == 3: ops.append(lambda kd=kd: sw(kd, 0))
                ops.append(lambda kd=kd, j=j: pm(kd, j))
                if j == 0 and kd > 0: ops.append(lambda kd=kd: sw(kd - 1, 1))
        ops.append(lambda: sw(3, 1, True))
        return ops

    e("s_cmp_ge_u32 s2, 256")
    e("s_cbranch_scc1 L_END")
    e(f"s_load_dwordx2 s[{sIDX}:{sIDX+1}], s[0:1], 0")
    e(f"s_load_dwordx2 s[{sTAB}:{sTAB+1}], s[0:1], 8")
    e(f"s_load_dwordx2 s[{sW1}:{sW1+1}], s[0:1], 40")
    e(f"s_load_dwordx4 s[16:19], s[0:1], 48")
    e(f"s_load_dwordx4 s[8:11], s[0:1], 16")
    e(f"s_load_dwordx2 s[12:13], s[0:1], 32")
    e(f"s_load_dwordx8 s[20:27], s[0:1], 64")
    if opt.get("stamp"):
        e(f"s_memrealtime s[{ST0+12}:{ST0+13}]")
        e(f"s_memtime s[{ST0}:{ST0+1}]")
        for i in range(1, 6): e(f"s_mov_b64 s[{ST0+2*i}:{ST0+2*i+1}], 0")
    e(f"v_lshrrev_b32 v{vT1}, 6, v0")
    e(f"v_and_b32 v{vL}, 63, v0")
    e(f"v_readfirstlane_b32 s{sW}, v{vT1}")
    e(f"s_and_b32 s{sNS}, s2, 7")
    e(f"s_lshr_b32 s{sMT}, s2, 3")
    e(f"s_mov_b32 s{sIDX+2}, 425984")
    e(f"s_mov_b32 s{sIDX+3}, 0x00020000")
    e(f"s_mov_b32 s{sTAB+2}, 256000")
    e(f"s_mov_b32 s{sTAB+3}, 0x00020000")
    e(f"s_mov_b32 s{sW1+2}, 3407872")
    e(f"s_mov_b32 s{sW1+3}, 0x00020000")
    e(f"s_mul_i32 s{sT1}, s{sW}, 3328")
    e(f"s_add_u32 m0, s{sT1}, {IDX_OFF}")
    e(f"s_mul_i32 s{sT2}, s{sMT}, 13312")
    e(f"s_add_u32 s{sT2}, s{sT2}, s{sT1}")
    e(f"v_lshlrev_b32 v{vT2}, 4, v{vL}")
    e(f"s_lshl_b32 s{sT3}, s{sNS}, 7")
    e(f"v_and_b32 v{vT3}, 7, v{vL}")
    e(f"v_lshlrev_b32 v{vXs}, 8, v{vT3}")
    e(f"s_lshl_b32 s{sPT}, s{sMT}, 13")
    e(f"s_lshl_b32 s{sD2}, s{sW}, 11")
    e(f"s_add_u32 s{sPT}, s{sPT}, s{sD2}")
    e(f"s_mul_i32 s{sMa}, s{sMT}, 24")
    e(f"s_mul_i32 s{sMb}, s{sW}, 6")
    e(f"s_add_u32 s{sMa}, s{sMa}, s{sMb}")
    e(f"v_min_u32 v{vT4}, 5, v{vL}")
    e(f"v_add_u32 v{vT4}, s{sMa}, v{vT4}")
    e(f"v_lshrrev_b32 v{vPB}, 5, v{vT4}")
    e(f"v_and_b32 v{vT4}, 31, v{vT4}")
    e(f"v_lshlrev_b32 v{vT4}, 10, v{vT4}")
    e(f"v_lshl_add_u32 v{vT4}, v{vPB}, 17, v{vT4}")
    e(f"v_lshrrev_b32 v{vT1}, 2, v{vL}")
    e(f"v_lshlrev_b32 v{vD[0]}, 8, v{vT1}")
    e(f"v_and_b32 v{vT1}, 3, v{vL}")
    e(f"v_lshl_add_u32 v{vD[0]}, v{vT1}, 4, v{vD[0]}")
    for j in range(1, 4): e(f"v_add_u32 v{vD[j]}, {j*3056}, v{vD[0]}")
    e(f"s_lshl_b32 s{sT1}, s{sW}, 4")
    e(f"s_min_u32 s{sT1}, s{sT1}, 47")
    e(f"s_mul_i32 s{sDM0}, s{sT1}, 1040")
    e(f"s_lshl_b32 s{sDSO}, s{sT1}, 12")
    e("s_waitcnt lgkmcnt(0)")
    g.stamp("karg")
    PF = opt.get("pf", 15)
    if PF & 1: g.vmem(f"buffer_load_dword v{vPf}, v{vXs}, s[{sTAB}:{sTAB+3}], s{sPT} offen")
    if PF & 2: g.vmem(f"buffer_load_dword v{vPf}, v{vT4}, s[{sW1}:{sW1+3}], s{sT3} offen")
    for j in range(4):
        if j == 3: e("s_mov_b64 exec, 0xffff")
        g.vmem(f"buffer_load_dwordx4 v{vT2}, s[{sIDX}:{sIDX+3}], s{sT2} offen{off(j*1024)} lds", tag="idx")
    e("s_mov_b64 exec, -1")
    e(f"s_load_dwordx4 s[{sWWv}:{sWWv+3}], s[{sWW}:{sWW+1}], 0")
    e(f"s_load_dwordx2 s[{sWWv+4}:{sWWv+5}], s[{sWW}:{sWW+1}], 16")
    e(f"s_load_dword s{sWWv+6}, s[{sWW}:{sWW+1}], 24")
    e(f"s_load_dword s{sWWv+7}, s[{sBW}:{sBW+1}], 0")
    e(f"s_load_dword s{sWWv+8}, s[{sB2}:{sB2+1}], 0")
    e(f"v_and_b32 v{vG}, 48, v{vL}")
    e(f"v_lshlrev_b32 v{vW1[0]}, 9, v{vG}")
    e(f"v_and_b32 v{vT1}, 8, v{vL}")
    e(f"v_lshl_add_u32 v{vW1[0]}, v{vT1}, 7, v{vW1[0]}")
    e(f"v_lshl_add_u32 v{vW1[0]}, v{vT3}, 4, v{vW1[0]}")
    e(f"s_mul_i32 s{sT1}, s{sW}, {6*131072}")
    e(f"s_add_u32 s{sT1}, s{sT1}, s{sT3}")
    e(f"v_add_u32 v{vW1[0]}, s{sT1}, v{vW1[0]}")
    e(f"v_add_u32 v{vW1[1]}, 4096, v{vW1[0]}")
    e(f"v_and_b32 v{vG}, 32, v{vL}")
    P01 = []
    for q in range(4):
        for jj in (0, 2):
            for c in (0, 1):
                for j in (jj, jj + 1):
                    def th(q=q, j=j, c=c, jj=jj):
                        if jj == 0 and c == 0 and j == 0:
                            e(f"s_add_u32 s{sMa}, s{sDM0}, {EVEN_OFF + q*4160}")
                            e(f"s_add_u32 s{sMb}, s{sDM0}, {ODD_OFF + q*4160}")
                            e(f"s_add_u32 s{sD2}, s{sDSO}, {q*16384}")
                            e(f"s_add_u32 s{sD3}, s{sDSO}, {q*16384 + 64}")
                        if j == jj:
                            e(f"s_mov_b32 m0, s{sMb if c else sMa}")
                            e("s_nop 0")
                        g.vmem(f"buffer_load_dwordx4 v{vD[j]}, s[{sTAB}:{sTAB+3}], s{sD3 if c else sD2} offen{off(j*1040)} lds", tag="p01")
                    P01.append(th)
    NP1 = opt.get("np1", 4)
    R0E = opt.get("r0e", -1)
    for i, th in enumerate(P01[:NP1]):
        if i == R0E:
            for kd in range(NL): w1_load(0, kd)
        th()
    if R0E == NP1:
        for kd in range(NL): w1_load(0, kd)
    e(f"v_mov_b32 v{vSel}, 0x05040100")
    e(f"v_mov_b32 v{vT4}, 0x03020706")
    e(f"v_cmp_ne_u32 vcc, 0, v{vT1}")
    e(f"s_mov_b32 s{s65}, 65")
    e(f"s_cmp_lt_u32 s{sW}, 2")
    e(f"v_cndmask_b32 v{vSel}, v{vSel}, v{vT4}, vcc")
    e(f"s_cselect_b32 s{sT1}, {EVEN_OFF}, {ODD_OFF}")
    e(f"v_add_u32 v{vGx}, s{sT1}, v{vG}")
    e(f"v_min_u32 v{vPB}, 25, v{vL}")
    e(f"v_lshlrev_b32 v{vPB}, 10, v{vPB}")
    e(f"s_mul_i32 s{sPB}, s{sMT}, 104")
    e(f"s_mul_i32 s{sT1}, s{sW}, 26")
    e(f"s_add_u32 s{sPB}, s{sPB}, s{sT1}")
    e(f"s_lshl_b32 s{sPB}, s{sPB}, 10")
    e(f"s_add_u32 s{sPB}, s{sPB}, s{sT3}")
    e(f"v_lshlrev_b32 v{vBW}, 1, v{vG}")
    e(f"v_add_u32 v{vBW}, s{sT3}, v{vBW}")
    e(f"s_and_b32 s{sT1}, s{sW}, 1")
    e(f"s_add_u32 s{sT1}, s{sT1}, 24")
    e(f"s_mul_i32 s{sXO}, s{sW}, 6")
    e(f"s_sub_u32 s{sXO}, s{sT1}, s{sXO}")
    e(f"s_lshl_b32 s{sT3}, s{sXO}, 2")
    e(f"s_lshl_b32 s{sXO}, s{sXO}, 17")
    e(f"s_lshr_b32 s{sT1}, s{sW}, 1")
    e(f"s_lshl_b32 s{sT1}, s{sT1}, 15")
    e(f"s_add_u32 s{sXO}, s{sXO}, s{sT1}")
    e(f"v_and_b32 v{vT4}, 31, v{vL}")
    e(f"v_mul_u32_u24 v{vT1}, 104, v{vT4}")
    e(f"s_mul_i32 s{sT1}, s{sW}, 24")
    e(f"s_add_u32 s{sT1}, s{sT1}, {IDX_OFF}")
    e(f"v_add_u32 v{vT1}, s{sT1}, v{vT1}")
    for a in range(4):
        e(f"s_add_u32 s{sT1}, s{sW}, {a+1}")
        e(f"s_and_b32 s{sT1}, s{sT1}, 3")
        e(f"s_mul_i32 s{sT2}, s{sT1}, 3328")
        e(f"v_add_u32 v{XR+a}, s{sT2}, v{vT1}")
        if a < 3:
            e(f"s_lshl_b32 s{sT1}, s{sT1}, 13")
            e(f"s_add_u32 s{sT1}, s{sT1}, {RED + a*32768}")
            e(f"v_add_u32 v{vRW[a]}, s{sT1}, v{vT2}")
    e(f"s_lshl_b32 s{sT1}, s{sW}, 13")
    e(f"s_add_u32 s{sT1}, s{sT1}, {RED}")
    e(f"v_add_u32 v{vRR0}, s{sT1}, v{vT2}")
    e(f"v_add_u32 v{vRR1}, 0x10000, v{vRR0}")
    for a in range(4): e(f"v_add_u32 v{W2P+a}, s{sT3}, v{XR+a}")
    e(f"v_add_u32 v{vWrO}, s{sDM0}, v{vT2}")
    e(f"v_add_u32 v{vWrE}, {EVEN_OFF}, v{vWrO}")
    e(f"s_lshl_b32 s{sT1}, s{sMT}, 7")
    e(f"s_lshl_b32 s{sT2}, s{sW}, 5")
    e(f"s_add_u32 s{sT1}, s{sT1}, s{sT2}")
    e(f"v_add_u32 v{vT4}, s{sT1}, v{vT4}")
    e(f"v_lshlrev_b32 v{vAt}, 3, v{vT4}")
    e(f"v_mov_b32 v{vZ0}, 0")
    e(f"v_mov_b32 v{vZ0+1}, 0")
    e(f"s_or_b32 s{sT1}, s{sNS}, s{sW}")
    e(f"s_cmp_eq_u32 s{sT1}, 0")
    e(f"s_cselect_b32 s{sRole}, 1, 0")
    e(f"s_cmp_eq_u32 s{sNS}, 0")
    e(f"s_cselect_b32 s{sWm}, -1, 0")
    g.stamp("iss")
    g.waitvm("idx")
    e("s_barrier")
    g.stamp("idx")
    for a in range(4):
        b = AD0 + 8 * a
        e(f"ds_read2_b64 {vr(b)}, v{XR+a} offset0:0 offset1:1")
        e(f"ds_read_b64 {vr(b+4,2)}, v{XR+a} offset:16")
        e(f"ds_read_b32 v{b+6}, v{W2P+a}")
    NP2 = opt.get("np2", 8)
    for th in P01[NP1:NP2]: th()
    g.waitl0()
    g.stamp("lidx")
    V = []
    for f in range(7):
        for a in range(4):
            V.append(lambda f=f, a=a: e(f"v_mad_u32_u24 v{AD(f,a)}, v{AD(f,a)}, s{s65}, v{vGx if f == 6 else vG}"))
        for a in range(4):
            V.append(lambda f=f, a=a: e(f"v_and_b32 v{AD(f,a)}, -16, v{AD(f,a)}"))
    R0P = opt.get("r0p", 12)
    M = P01[NP2:R0P] + [lambda kd=kd: w1_load(0, kd) for kd in range(NL if R0E < 0 else 0)] + P01[R0P:] + [lambda s=s, kd=kd: w1_load(s, kd) for s in (1, 2) for kd in range(NL)]
    per = opt.get("per", 4)
    vi = 0
    for th in M:
        th()
        for fn in V[vi:vi + per]: fn()
        vi += per
    for fn in V[vi:]: fn()
    if opt.get("xE"):
        for f in range(7):
            for a in range(4): e(f"v_lshlrev_b32 v{AD(f,a)}, {4 if opt['xE']==1 else 5}, v{vL}")
    for fn in xf_ops(0): fn()
    g.stamp("f0")
    g.waitvm("p01")
    e("s_barrier")
    g.stamp("p01")

    mf = []
    for s in range(22):
        for a in range(4):
            for kh in range(2):
                for t in range(2): mf.append((s, a, t, kh))
    for a in range(4):
        for t in ((1, 0) if a == 2 else (0, 1)):
            for s in range(22, 26):
                for kh in range(2): mf.append((s, a, t, kh))
    pre = [[] for _ in range(NK + 1)]
    post = [[] for _ in range(NK)]
    for a in range(4):
        for kh in range(2): e_read(0, a, kh)
    g.stamp("s0")
    BAR12 = opt.get("bar12", 4); EW = opt.get("ew", 8)
    for k, (s, a, t, kh) in enumerate(mf):
        if s == 0: pre[k].append(lambda s=s, a=a, kh=kh: g.waitl(("E", s, a, kh)))
        elif s < 22:
            pass
        elif k % 16 < 8 and (k % 16) % (EW // 2) == 0:
            pre[k].append(lambda k=k: g.waitl(("E", mf[k + EW // 2 - 1][0], mf[k][1], mf[k + EW // 2 - 1][3])))
    for k in range(16, KT, EW):
        m = mf[k + EW - 1]
        pre[k].append(lambda m=m: g.waitl(("E", m[0], m[1], m[3])))
    pre[K(7, 0)].append(lambda: e("s_barrier"))
    def bar12():
        g.waitvm("c2dma"); g.waitl(("tw", 2)); g.waitl(("E", 12, 3, 1)); e("s_barrier")
    pre[K(12, BAR12)].append(bar12)
    def bar18():
        g.waitl(("tw", 3)); e("s_barrier")
    pre[K(18, 1)].append(bar18)
    pre[K(21, 0)].append(lambda: e("s_barrier"))
    for s in range(1, 22):
        for a in range(4):
            for kh in range(2):
                pos = K(s - 1, 4 * a + 2 * kh + 1)
                if s == 13 and pos < K(12, BAR12): pos = K(12, BAR12)
                post[pos].append(lambda s=s, a=a, kh=kh: e_read(s, a, kh))
    for a in range(4):
        for i in range(8):
            post[KT + 16 * (a - 1) + 2 * i + (1 if a == 0 else 0)].append(lambda a=a, i=i: e_read(22 + (i >> 1), a, i & 1))
    FLEX = []
    for n in range(1, NS): FLEX.append((bw0[n], bw1[n], xf_ops(n)))
    NC2A = 9
    def t_load(p, c):
        q, j = p >> 2, p & 3
        if c == 2: e(f"s_add_u32 s{sD2}, s{sDSO}, {q*16384 + 128}")
        if c == 2 and p >= NC2A:
            e(f"s_add_u32 m0, s{sDM0}, {EVEN_OFF + q*4160}")
            e("s_nop 0")
            g.vmem(f"buffer_load_dwordx4 v{vD[j]}, s[{sTAB}:{sTAB+3}], s{sD2} offen{off(j*1040)} lds", tag="c2dma")
        else:
            r = (C2A if c == 2 else C3A) + 4 * p
            g.vmem(f"buffer_load_dwordx4 {ar(r)}, v{vD[j]}, s[{sTAB}:{sTAB+3}], s{sD2} offen{off(j*1040 + (64 if c == 3 else 0))}", tag=("t", p, c))
    def t_write(p, c):
        g.waitvm(("t", p, c))
        if opt.get("xT"):
            g.ltags[("tw", c)] = g.lg; return
        r = (C2A if c == 2 else C3A) + 4 * p
        g.lds(f"ds_write_b128 v{vWrE if c == 2 else vWrO}, {ar(r)}{off(p*1040)}", tag=("tw", c))
    for n in range(3, NS):
        for kd in range(NL): post[rp[n][kd]].append(lambda n=n, kd=kd: w1_load(n, kd))
    tp = []
    for s in range(1, 11): tp += [K(s, 3), K(s, 11)] if s % 2 else [K(s, 10)]
    tp.append(K(11, 1))
    if opt.get("tl"):
        tp = [K(3, 3), K(3, 11), K(4, 7), K(5, 1), K(5, 7), K(5, 13), K(6, 3), K(6, 9), K(6, 15), K(7, 5), K(7, 13), K(8, 5), K(8, 13), K(9, 7), K(10, 1), K(10, 11)]
    assert len(tp) == 16 and tp[NC2A - 1] < K(7, 0) <= tp[NC2A]
    TS = opt.get("ts", 0)
    for p in range(16):
        post[tp[p]].append(lambda p=p: t_load(p, 2))
        post[tp[p] + TS].append(lambda p=p: t_load(p, 3))
    if PF & 4: post[K(0, 2)].append(lambda: g.vmem(f"buffer_load_dword v{vPf}, v{vXs}, s[{sTAB}:{sTAB+3}], s{sPT} offen offset:128"))
    if PF & 8: post[K(0, 3)].append(lambda: g.vmem(f"buffer_load_dword v{vPf}, v{vPB}, s[{sW1}:{sW1+3}], s{sPB} offen"))
    wl = [(7, 4), (7, 12), (8, 4), (8, 12), (9, 4), (9, 12), (10, 4), (10, 12), (11, 4)]
    for p in range(NC2A): post[K(*wl[p])].append(lambda p=p: t_write(p, 2))
    wl = [(12, 7), (12, 11), (12, 15)] + [(s, i) for s in range(13, 17) for i in (3, 7, 11)] + [(17, 3)]
    for p in range(16): post[K(*wl[p])].append(lambda p=p: t_write(p, 3))
    def guard(fn):
        def w():
            a, b = g.vdone, g.ldone
            fn()
            g.vdone, g.ldone = a, b
        return w
    def claim():
        e(f"s_cmp_eq_u32 s{sRole}, 0")
        e("s_cbranch_scc1 L_NOC")
        e(f"s_lshl_b32 s{sT1}, s{sMT}, 2")
        e(f"v_mov_b32 v{vT2}, s{sT1}")
        e(f"v_mov_b32 v{vClaim}, 1")
        e("s_mov_b64 exec, 1")
        e(f"global_atomic_add v{vClaim}, v{vT2}, v{vClaim}, s[{sDBG}:{sDBG+1}] sc0 sc1")
        e("s_mov_b64 exec, -1")
        g.lab("L_NOC")
        g.mark("claim")
    post[K(0, 14)].append(claim)
    def swap():
        e(f"s_cmp_eq_u32 s{sRole}, 0")
        e("s_cbranch_scc1 L_NOW")
        g.waitvm("claim", force=True)
        e(f"v_readfirstlane_b32 s{sT1}, v{vClaim}")
        e(f"s_cmp_lg_u32 s{sT1}, 0")
        e(f"s_cselect_b32 s{sRole}, 0, 1")
        e("s_cbranch_scc1 L_NOW")
        e(f"s_lshl_b32 s{sT1}, s{sMT}, 10")
        e(f"v_lshlrev_b32 v{vT2}, 3, v{vL}")
        e(f"v_add_u32 v{vT2}, s{sT1}, v{vT2}")
        e(f"global_atomic_swap_x2 {vr(XR,2)}, v{vT2}, {vr(vZ0,2)}, s[{sWS}:{sWS+1}] sc0 sc1")
        e(f"global_atomic_swap_x2 {vr(XR+2,2)}, v{vT2}, {vr(vZ0,2)}, s[{sWS}:{sWS+1}] offset:512 sc0 sc1")
        g.lab("L_NOW")
        g.mark("swap")
    post[K(4, 14)].append(guard(swap))
    def flag():
        e(f"s_cmp_eq_u32 s{sRole}, 0")
        e("s_cbranch_scc1 L_NOF")
        g.waitvm("swap", force=True)
        e(f"s_lshl_b32 s{sT1}, s{sMT}, 2")
        e(f"v_mov_b32 v{vT2}, s{sT1}")
        e(f"v_mov_b32 v{vT3}, 1")
        e("s_mov_b64 exec, 1")
        e(f"global_store_dword v{vT2}, v{vT3}, s[{sDBG}:{sDBG+1}] offset:128 sc0 sc1")
        e("s_mov_b64 exec, -1")
        g.lab("L_NOF")
    post[K(9, 14)].append(guard(flag))
    for r in range(4):
        post[K(0, 4 + 2 * r)].append(lambda r=r: g.vmem(f"global_load_dwordx4 {vr(W2P+4*r)}, v{vBW}, s[{sB1}:{sB1+1}]{off(16*r)}", tag="b1"))
        post[K(20, 2 + 4 * r)].append(lambda r=r: g.vmem(f"global_load_dwordx4 {vr(W2P+4*r)}, v{vBW}, s[{sW2}:{sW2+1}]{off(16*r)}", tag="w2"))
    def xload():
        e(f"v_lshrrev_b32 v{vT2}, 3, v{vAt}")
        e(f"v_mul_u32_u24 v{vT2}, 26, v{vT2}")
        e(f"v_and_b32 v{vT2}, -4, v{vT2}")
        g.vmem(f"global_load_dwordx4 {vr(XR)}, v{vT2}, s[{sX_}:{sX_+1}]")
        g.vmem(f"global_load_dwordx3 {vr(XR+4,3)}, v{vT2}, s[{sX_}:{sX_+1}] offset:16", tag="x")
    post[K(19, 0)].append(xload)
    def rdflag():
        e(f"s_lshl_b32 s{sT1}, s{sMT}, 2")
        e(f"v_mov_b32 v{vT3}, s{sT1}")
        g.vmem(f"global_load_dword v{vFlag}, v{vT3}, s[{sDBG}:{sDBG+1}] offset:128 sc1", tag="flag")
    post[K(23, 3)].append(rdflag)
    def spread(ops, k0, k1):
        for i, fn in enumerate(ops): post[k0 + (i * (k1 - k0)) // len(ops)].append(fn)
    B1S = opt.get("b1s", 3)
    for q in range(4):
        ops = []
        t = q >> 1
        for r in range(8 * (q & 1), 8 * (q & 1) + 4):
            d = W2P + DI(t, r); h = OWN0 + 16 * t + r
            ops.append(lambda d=d: (g.waitvm("b1"), e(f"v_lshlrev_b32 v{vT1}, 16, v{d}")))
            ops.append(lambda d=d: e(f"v_and_b32 v{d}, 0xffff0000, v{d}"))
            ops.append(lambda h=h: e(f"v_add_f32 v{h}, v{h}, v{vT1}"))
            ops.append(lambda h=h, d=d: e(f"v_add_f32 v{h+4}, v{h+4}, v{d}"))
        FLEX.append((K(B1S + q, 1), K(B1S + q, 11), ops))
    XX = [XR + i for i in range(7)]
    ops = [lambda: g.waitvm("x"),
           lambda: e(f"v_and_b32 v{vXs}, 1, v{vL}"), lambda: e(f"v_lshlrev_b32 v{vXs}, 4, v{vXs}"),
           lambda: e(f"s_lshl_b32 s{sT1}, s{sWWv+7}, 16"), lambda: e(f"s_lshl_b32 s{sT2}, s{sWWv+8}, 16"),
           lambda: e(f"v_mov_b32 v{vWide}, s{sT1}"), lambda: e(f"v_add_f32 v{vWide}, s{sT2}, v{vWide}"),
           lambda: e(f"s_and_b32 s{sWWv+6}, s{sWWv+6}, 0xffff")]
    for i in range(6): ops.append(lambda i=i: e(f"v_alignbit_b32 v{XX[i]}, v{XX[i+1]}, v{XX[i]}, v{vXs}"))
    ops.append(lambda: e(f"v_bfe_u32 v{XX[6]}, v{XX[6]}, v{vXs}, 16"))
    for i in range(7): ops.append(lambda i=i: e(f"v_dot2_f32_bf16 v{vWide}, v{XX[i]}, s{sWWv+i}, v{vWide}"))
    FLEX.append((KT, KT + 20, ops))
    post[KT + 22].append(lambda: e(f"v_and_b32 v{vAcc}, s{sWm}, v{vWide}"))
    post[KT + 23].append(lambda: (e(f"v_mul_f32 v{vAcc}, 0.5, v{vAcc}"), e(f"v_mov_b32 v{vT4}, 0")))
    WS = opt.get("ws", 2)
    def CT(c): return (c >> 1, (c & 1) ^ (c >= 4))
    for c in range(6):
        a, t = CT(c)
        for i in range(4):
            if opt.get("xR", 0) & 1: g.ltags[("rw", c)] = 0; continue
            post[KT + 8 * c + 9 + WS * i].append(lambda a=a, t=t, i=i, c=c: g.lds(f"ds_write_b128 v{vRW[a]}, {ar(ACCB(a,t)+4*i)}{off((4*t+i)*1024)}", tag=("rw", c)))
    def rbar(c):
        def f():
            g.waitl(("rw", c))
            if not opt.get("xR", 0) & 2: e("s_barrier")
        return f
    def rread(c, k0, per=1):
        a, t = CT(c)
        for i in range(4):
            base, o = (vRR0, a * 32768 + (4*t+i) * 1024) if a < 2 else (vRR1, (4*t+i) * 1024)
            post[k0 + i // per].append(lambda i=i, base=base, o=o, t=t, c=c: g.lds(f"ds_read_b128 {vr(P[t]+4*i)}, v{base}{off(o)}", tag=("rr", c, i)))
    def radd(c, k0, k1):
        t = CT(c)[1]; ops = []
        for i in range(16):
            def f(i=i):
                if i % 8 == 0: g.waitl(("rr", c, i // 4 + 1))
                e(f"v_add_f32 v{OWN0+16*t+i}, v{OWN0+16*t+i}, v{P[t]+i}")
            ops.append(f)
        FLEX.append((k0, k1, ops))
    BD = opt.get("bd", 3)
    def BK(c): return KT + 8 * c + 9 + 3 * WS + BD
    pre[BK(1)].append(rbar(1)); rread(0, BK(1)); rread(1, BK(1) + 4); radd(0, BK(1) + 5, BK(1) + 10); radd(1, BK(1) + 9, BK(3))
    pre[BK(2)].append(rbar(2)); rread(2, BK(1) + 10); radd(2, BK(1) + 15, KT + 48)
    pre[BK(3)].append(rbar(3)); rread(3, BK(3), 2); radd(3, BK(3) + 3, BK(4))
    pre[BK(4)].append(rbar(4)); rread(4, BK(4), 2); radd(4, BK(4) + 3, KT + 56)
    pre[BK(5)].append(rbar(5)); rread(5, BK(5), 2); radd(5, BK(5) + 3, KT + 64)
    def fin(t):
        ops = []; h = OWN0 + 16 * t
        R = (0, 1, 2, 3, 8, 9, 10, 11)
        for r in R: ops.append(lambda r=r: e(f"v_cvt_pk_bf16_f32 v{h+r}, v{h+r}, v{h+r+4}"))
        for r in R: ops.append(lambda r=r: e(f"v_pk_max_i16 v{h+r}, v{h+r}, 0"))
        for r in R:
            A = vAcc if r & 1 else vT4
            ops.append(lambda r=r, A=A: e(f"v_dot2_f32_bf16 v{A}, v{h+r}, v{W2P + DI(t, r)}, v{A}"))
        return ops
    post[KT + 57].append(lambda: (g.waitvm("flag"), e(f"v_readfirstlane_b32 s{sT1}, v{vFlag}"), e(f"s_mov_b32 s{sT2}, 0x49000000"), e(f"s_mov_b32 s{sT3}, 0xc9000000")))
    def cost(line):
        w = line.split()
        if not w or line.endswith(":"): return 0
        op = w[0]
        if op == "s_nop": return 4 * (int(w[1]) + 1)
        if op.startswith("ds_write_b128"): return opt.get("cw", 16)
        if op.startswith("v_dot2"): return 12
        if op.startswith("v_permlane"): return opt.get("cs", 8)
        if op.startswith("buffer_load") or op.startswith("global_load"): return opt.get("cv", 4)
        if op.startswith("v_mfma"): return 0
        return 4
    import copy
    def measure():
        sv = (len(g.o), g.vm, g.lg, dict(g.tags), dict(g.ltags), g.vdone, g.ldone)
        c = []
        for k in range(NK):
            n0 = len(g.o)
            for fn in post[k]: fn()
            for fn in pre[k + 1]: fn()
            c.append(sum(cost(x) for x in g.o[n0:]))
        del g.o[sv[0]:]
        _, g.vm, g.lg, g.tags, g.ltags, g.vdone, g.ldone = sv
        return c
    def opcost(fn):
        sv = (len(g.o), g.vm, g.lg, dict(g.tags), dict(g.ltags), g.vdone, g.ldone)
        g.vdone = 10**9; g.ldone = 10**9
        class D(dict):
            def __missing__(s, k): return 0
        g.tags = D(); g.ltags = D()
        fn()
        c = sum(cost(x) for x in g.o[sv[0]:])
        del g.o[sv[0]:]
        _, g.vm, g.lg, g.tags, g.ltags, g.vdone, g.ldone = sv
        return c
    load = measure()
    for k0, k1, ops in sorted(FLEX, key=lambda x: (x[1] - x[0]) / len(x[2])):
        cs = [opcost(fn) for fn in ops]
        for lvl in range(4, 200, 2):
            k = k0; asg = []; cur = load[k]
            for c_ in cs:
                while k < k1 and cur + c_ > lvl:
                    k += 1; cur = load[k] if k < k1 else 0
                if k >= k1: break
                asg.append(k); cur += c_
            if len(asg) == len(cs): break
        for fn, k, c_ in zip(ops, asg, cs):
            post[k].append(fn); load[k] += c_
    load = measure()
    if opt.get("rep"):
        for s_ in range(NS): print(s_, load[16*s_:16*s_+16], sum(max(32, 8 + x) for x in load[16*s_:16*s_+16]))
    for k, (s, a, t, kh) in enumerate(mf):
        for fn in pre[k]: fn()
        c = "0" if (s == 0 and kh == 0) else ACC(a, t)
        rd = set(range(F(s, 2*t+kh), F(s, 2*t+kh) + 4)) | (set(range(OWN0 + 16*t, OWN0 + 16*t + 16)) if a == 3 else set())
        for d in (1, 2):
            w = g.o[-d].replace(",", " ").split()
            if w[0].startswith("v_") and not w[0].startswith("v_mfma") and w[1][0] == "v" and w[1][1:].isdigit() and int(w[1][1:]) in rd:
                e(f"s_nop {2 - d}"); print("hazard nop at", k); break
        e(f"v_mfma_f32_32x32x16_bf16 {ACC(a,t)}, {vr(F(s, 2*t+kh))}, {ar(ereg(s, a, kh))}, {c}")
        n0 = len(g.o)
        for fn in post[k]: fn()
        if k % 16 == 15: g.stamp(f"s{k//16+1}")
    g.waitvm("w2")
    for fn in fin(0): fn()
    for fn in fin(1): fn()
    e(f"s_cmp_eq_u32 s{sT1}, 0")
    e("s_nop 1")
    e(f"v_add_f32 v{vT1}, v{vAcc}, v{vT4}")
    e(f"v_add_f32 v{vT2}, v{vAcc}, v{vT4}")
    e("s_nop 1")
    e(f"v_permlane32_swap_b32 v{vT1}, v{vT2}")
    e(f"v_add_f32 v{vT1}, v{vT1}, v{vT2}")
    e(f"v_min_f32 v{vT1}, s{sT2}, v{vT1}")
    e(f"v_max_f32 v{vT1}, s{sT3}, v{vT1}")
    e(f"v_floor_f32 v{vT2}, v{vT1}")
    e(f"v_sub_f32 v{vT3}, v{vT1}, v{vT2}")
    e(f"v_cvt_i32_f32 v{T0+1}, v{vT2}")
    e(f"v_mul_f32 v{vT3}, 0x4f800000, v{vT3}")
    e(f"v_add_u32 v{T0+1}, 0x1000000, v{T0+1}")
    e(f"v_cvt_u32_f32 v{T0}, v{vT3}")
    g.stamp("red")
    e("s_cbranch_scc1 L_SLOW")
    g.lab("L_GO")
    e("s_mov_b32 exec_lo, -1")
    e("s_mov_b32 exec_hi, 0")
    e(f"global_atomic_add_x2 {vr(T0+2,2)}, v{vAt}, {vr(T0,2)}, s[{sWS}:{sWS+1}] sc0 sc1")
    e(f"v_lshrrev_b32 v{vAt}, 2, v{vAt}")
    e("s_waitcnt vmcnt(0)")
    g.stamp("atom")
    e(f"v_add_co_u32 v{T0}, vcc, v{T0}, v{T0+2}")
    e(f"v_add_u32 v{vT1}, 0x800000, v{T0+3}")
    e(f"v_lshrrev_b32 v{vT1}, 24, v{vT1}")
    e(f"v_addc_co_u32 v{T0+1}, vcc, v{T0+1}, v{T0+3}, vcc")
    e(f"v_cmp_eq_u32 vcc, 7, v{vT1}")
    e(f"v_cvt_f32_u32 v{T0}, v{T0}")
    e(f"v_subrev_u32 v{T0+1}, 0x8000000, v{T0+1}")
    e(f"v_cvt_f32_i32 v{T0+1}, v{T0+1}")
    e("s_and_b64 exec, exec, vcc")
    e("s_cbranch_execz L_FIN")
    e(f"v_fmac_f32 v{T0+1}, 0x2f800000, v{T0}")
    e(f"v_mul_f32 v{T0+1}, 0xbfb8aa3b, v{T0+1}")
    e(f"v_exp_f32 v{T0+1}, v{T0+1}")
    e("s_nop 0")
    e(f"v_add_f32 v{T0+1}, 1.0, v{T0+1}")
    e(f"v_rcp_f32 v{T0+1}, v{T0+1}")
    e("s_nop 0")
    e(f"v_cvt_pk_bf16_f32 v{T0+1}, v{T0+1}, v{T0+1}")
    e(f"global_store_short v{vAt}, v{T0+1}, s[{sOUT}:{sOUT+1}]")
    g.lab("L_FIN")
    if opt.get("stamp"):
        e("s_mov_b64 exec, -1")
        e(f"s_memrealtime s[{ST0+14}:{ST0+15}]")
        e("s_waitcnt lgkmcnt(0)")
        e(f"s_cmp_lg_u32 s{sW}, 0")
        e("s_cbranch_scc1 L_END")
        e("s_mov_b64 exec, 1")
        e("s_lshl_b32 s3, s2, 6")
        e("s_add_u32 s3, s3, 0x200000")
        e("v_mov_b32 v2, s3")
        for i in range(16): e(f"v_mov_b32 v{4+i}, s{ST0+i}")
        for i in range(4): e(f"global_store_dwordx4 v2, v[{4+4*i}:{7+4*i}], s[{sWS}:{sWS+1}] offset:{16*i}")
    g.lab("L_END")
    e("s_endpgm")
    g.lab("L_SLOW")
    e(f"s_lshl_b32 s{sT1}, s{sMT}, 2")
    e(f"v_mov_b32 v{vT2}, s{sT1}")
    e(f"v_mov_b32 v{vClaim}, 1")
    e("s_mov_b64 exec, 1")
    e(f"global_atomic_add v{vClaim}, v{vT2}, v{vClaim}, s[{sDBG}:{sDBG+1}] sc0 sc1")
    e("s_waitcnt vmcnt(0)")
    e(f"v_readfirstlane_b32 s{sT1}, v{vClaim}")
    e(f"s_cmp_lg_u32 s{sT1}, 0")
    e("s_cbranch_scc1 L_SPIN")
    e("s_mov_b64 exec, -1")
    e(f"s_lshl_b32 s{sT1}, s{sMT}, 10")
    e(f"v_lshlrev_b32 v{vT3}, 3, v{vL}")
    e(f"v_add_u32 v{vT3}, s{sT1}, v{vT3}")
    e(f"global_atomic_swap_x2 {vr(XR,2)}, v{vT3}, {vr(vZ0,2)}, s[{sWS}:{sWS+1}] sc0 sc1")
    e(f"global_atomic_swap_x2 {vr(XR+2,2)}, v{vT3}, {vr(vZ0,2)}, s[{sWS}:{sWS+1}] offset:512 sc0 sc1")
    e(f"v_mov_b32 v{vT3}, 1")
    e("s_waitcnt vmcnt(0)")
    e("s_mov_b64 exec, 1")
    e(f"global_store_dword v{vT2}, v{vT3}, s[{sDBG}:{sDBG+1}] offset:128 sc0 sc1")
    e("s_branch L_GO")
    g.lab("L_SPIN")
    e(f"global_atomic_or v{vClaim}, v{vT2}, v{vZ0}, s[{sDBG}:{sDBG+1}] offset:128 sc0 sc1")
    e("s_waitcnt vmcnt(0)")
    e(f"v_readfirstlane_b32 s{sT1}, v{vClaim}")
    e(f"s_cmp_lg_u32 s{sT1}, 0")
    e("s_cbranch_scc1 L_GO")
    e("s_sleep 8")
    e("s_branch L_SPIN")

    ref = open(REF).read().split("\n")
    hdr = []
    for ln in ref:
        if ln.startswith("; @launch"):
            hdr.append(f"; @launch grid=(256,1,1) block=(256,1,1) lds={LDS_BYTES}"); break
        hdr.append(ln)
    hdr += ['.amdgcn_target "amdgcn-amd-amdhsa--gfx950"', ".text", f".globl {KN}", ".p2align 8", f".type {KN},@function", f"{KN}:"]
    ftr = ['.section .rodata,"a"', ".p2align 6", f".amdhsa_kernel {KN}",
           "  .amdhsa_next_free_vgpr 512", "  .amdhsa_next_free_sgpr 102", "  .amdhsa_accum_offset 256",
           "  .amdhsa_group_segment_fixed_size 0", "  .amdhsa_kernarg_size 96", "  .amdhsa_user_sgpr_count 2",
           "  .amdhsa_user_sgpr_kernarg_segment_ptr 1", "  .amdhsa_system_sgpr_workgroup_id_x 1", ".end_amdhsa_kernel", ""]
    return "\n".join(hdr + g.o + ftr)

if __name__ == "__main__":
    opt = {}
    for a in sys.argv[2:]:
        k, v = a.split("="); opt[k] = v.split(",") if k == "stamp" else int(v)
    open(sys.argv[1], "w").write(gen(opt))
```

```python
import sys
KN = "standalone__deep_cross_wide_deep__recsys_kernel"
REF = "standalone__deep_cross_wide_deep__recsys.s.ref"

ODD_OFF = 0
EVEN_OFF = 65504
IDX_OFF = 131008
RED = 65504
LDS_BYTES = 163840

vWrO, vL, vG, vGx, vW1a, vW1b, vSel, vBW = 0, 1, 2, 3, 4, 5, 6, 7
vD = [8, 9, 10, 11]
vRW = [12, 13, 14]
vRR0 = 15
AD0 = 16
BLK0 = 48
NBLK = 8
OWN0 = 176
W2P = 208
XR = 224
T0 = 232
vRR1, vWide, vFlag, vAt, vPf, vClaim = 236, 237, 238, 239, 240, 241
vT1, vT2, vT3, vT4 = 242, 243, 244, 245
vZ0 = 246
vWrE, vAcc, vXs, vPB = 248, 249, 250, 251
EB = [96, 128]
C3A = 128
C2A = 192
B1A = 240
sIDX, sTAB, sW1 = 28, 32, 36
sX_, sWW, sBW, sB1, sW2, sB2, sOUT, sDBG, sWS = 8, 10, 12, 16, 18, 20, 22, 24, 26
sW, sNS, sMT, sK, sXO, sDM0, sDSO, s65, sT1, sT2, sT3, sRole, sD2, sD3, sMa, sMb, sPT, sPB, sWm = 3, 4, 5, 6, 7, 40, 41, 42, 43, 44, 45, 46, 47, 48, 49, 50, 51, 52, 53
sWWv = 64
sSel0, sSel1 = 54, 55
vW1 = [4, 5, 232, 233]
ST0 = 80

def AD(f, a): return AD0 + 8 * a + f
def vr(b, n=4): return f"v[{b}:{b+n-1}]"
def ar(b, n=4): return f"a[{b}:{b+n-1}]"
def ACCB(a, t): return (a * 2 + t) * 16
def ACC(a, t): return ar(ACCB(a, t), 16) if a < 3 else vr(OWN0 + 16 * t, 16)
def DI(t, r): return 4 * (r & 3) + 2 * t + (r >> 3)
def LI(r): return 8 * ((r >> 2) & 1) + 2 * (r & 3) + (r >> 3)
def off(x): return f" offset:{x}" if x else ""

class G:
    def __init__(s, opt):
        s.o = []; s.vm = 0; s.lg = 0; s.tags = {}; s.ltags = {}; s.opt = opt
        s.vdone = 0; s.ldone = 0
    def e(s, x): s.o.append("  " + x)
    def lab(s, x): s.o.append(x + ":")
    def vmem(s, x, tag=None):
        s.e(x); s.vm += 1
        if tag is not None: s.tags[tag] = s.vm
    def lds(s, x, tag=None):
        s.e(x); s.lg += 1
        if tag is not None: s.ltags[tag] = s.lg
    def mark(s, tag): s.tags[tag] = s.vm
    def waitvm(s, tag, force=False):
        t = s.tags[tag]
        if t <= s.vdone and not force: return
        n = min(s.vm - t, 63); s.vdone = max(s.vdone, s.vm - n)
        s.e(f"s_waitcnt vmcnt({n})")
    def waitl(s, tag):
        t = s.ltags[tag]
        if t <= s.ldone: return
        n = min(s.lg - t, 15); s.ldone = max(s.ldone, s.lg - n)
        s.e(f"s_waitcnt lgkmcnt({n})")
    def waitl0(s):
        s.ldone = s.lg; s.e("s_waitcnt lgkmcnt(0)")
    def stamp(s, name):
        L = s.opt.get("stamp")
        if L and name in L:
            i = 1 + L.index(name)
            s.e(f"s_memtime s[{ST0+2*i}:{ST0+2*i+1}]"); s.waitl0()

def stepinfo(s):
    h, r = divmod(s, 13)
    if r < 6: return (r, 2 * h)
    if r == 6: return (6, 2 * h)
    return (r - 7, 2 * h + 1)

def gen(opt):
    g = G(opt); e = g.e
    NS = 26; KT = 16 * 22; NK = 16 * NS
    def K(s, i): return 16 * s + i
    C0 = opt.get("c0", 13)
    bw0 = {}; bw1 = {}
    for n in range(1, C0): bw0[n] = 16 * (n - 1); bw1[n] = 16 * n - 2
    bw0[1] = opt.get("bw1", 5)
    span = KT - 2 - 16 * (C0 - 1)
    for n in range(C0, NS):
        bw0[n] = 16 * (C0 - 1) + ((n - C0) * span) // (NS - C0)
        bw1[n] = 16 * (C0 - 1) + ((n + 1 - C0) * span) // (NS - C0)
        assert bw1[n] <= 16 * n - 2
    rp = {}
    NL = 4
    for s in range(0, 11): rp[s + 3] = [K(s, 4 * i) for i in range(NL)]
    RD = opt.get("rd", 30)
    prev = K(10, 15)
    for n in range(14, NS):
        st = max(bw0[n] - RD, prev + 1)
        ln = bw1[n] - bw0[n]
        rp[n] = [st + (i * ln) // NL for i in range(NL)]; prev = rp[n][-1]
        assert prev < bw0[n] - 4, (n, prev, bw0[n])
    iv = []
    for n in range(NS):
        iv.append((("raw", n), rp[n][0] if n >= 3 else -1, bw1[n] - 1 if n else -1))
        iv.append((("F", n), bw0[n] if n else -2, 16 * n + 15 if n < 22 else NK))
    iv += [(("P", 0), KT + 24, NK), (("P", 1), KT + 24, NK)]
    iv.sort(key=lambda x: x[1])
    free = [-10] * NBLK; blk = {}
    for name, a, b in iv:
        c = [i for i in range(NBLK) if free[i] < a]
        assert c, (name, a, free)
        i = min(c, key=lambda i: free[i]); blk[name] = BLK0 + 16 * i; free[i] = b
    def RAW(s, i): return blk[("raw", s)] + 4 * i
    def F(s, j): return blk[("F", s)] + 4 * j
    P = [blk[("P", 0)], blk[("P", 1)]]

    def w1_load(s, i):
        f, c = stepinfo(s)
        if i == 0:
            if f < 6: e(f"s_mov_b32 s{sK}, {f*131072 + c*32768}")
            else: e(f"s_add_u32 s{sK}, s{sXO}, {c*32768}")
        g.vmem(f"buffer_load_dwordx4 {vr(RAW(s, i))}, v{vW1[i >> 1]}, s[{sW1}:{sW1+3}], s{sK} offen{off((i & 1) * 2048)}", tag=("raw", s, i))
    def ereg(s, a, kh):
        if s < 22: return EB[0] + 8 * a + 4 * kh
        return EB[(a + 1) & 1] + 8 * (s - 22) + 4 * kh
    def e_read(s, a, kh):
        f, c = stepinfo(s)
        o = (0 if f == 6 else (EVEN_OFF if c % 2 == 0 else ODD_OFF)) + 16 * kh
        if opt.get("xN") and s > 0:
            g.ltags[("E", s, a, kh)] = g.ldone; return
        g.lds(f"ds_read_b128 {ar(ereg(s, a, kh))}, v{AD(f, a)}{off(o)}", tag=("E", s, a, kh))
    WG = opt.get("wg", 2)
    def xf_ops(s):
        ops = []
        def mv(kd, j):
            if j == 0 and kd % WG == 0: g.waitvm(("raw", s, kd + WG - 1))
            e(f"v_mov_b32_dpp v{T0 + j}, v{RAW(s, kd) + j} row_ror:8 row_mask:0xf bank_mask:0xf")
        def pm(kd, j): e(f"v_perm_b32 v{F(s, j) + kd}, v{T0 + j}, v{RAW(s, kd) + j}, v{vSel}")
        def sw(kd, t, nop=False):
            if nop: e("s_nop 1")
            e(f"v_permlane16_swap_b32 v{F(s, 2*t) + kd}, v{F(s, 2*t+1) + kd}")
        for kd in range(4):
            for j in range(4):
                ops.append(lambda kd=kd, j=j: mv(kd, j))
                if j == 3: ops.append(lambda kd=kd: sw(kd, 0))
                ops.append(lambda kd=kd, j=j: pm(kd, j))
                if j == 0 and kd > 0: ops.append(lambda kd=kd: sw(kd - 1, 1))
        ops.append(lambda: sw(3, 1, True))
        return ops

    e("s_cmp_ge_u32 s2, 256")
    e("s_cbranch_scc1 L_END")
    e(f"s_load_dwordx2 s[{sIDX}:{sIDX+1}], s[0:1], 0")
    e(f"s_load_dwordx2 s[{sTAB}:{sTAB+1}], s[0:1], 8")
    e(f"s_load_dwordx2 s[{sW1}:{sW1+1}], s[0:1], 40")
    e(f"s_load_dwordx4 s[16:19], s[0:1], 48")
    e(f"s_load_dwordx4 s[8:11], s[0:1], 16")
    e(f"s_load_dwordx2 s[12:13], s[0:1], 32")
    e(f"s_load_dwordx8 s[20:27], s[0:1], 64")
    if opt.get("stamp"):
        e(f"s_memrealtime s[{ST0+12}:{ST0+13}]")
        e(f"s_memtime s[{ST0}:{ST0+1}]")
        for i in range(1, 6): e(f"s_mov_b64 s[{ST0+2*i}:{ST0+2*i+1}], 0")
    e(f"v_lshrrev_b32 v{vT1}, 6, v0")
    e(f"v_and_b32 v{vL}, 63, v0")
    e(f"v_readfirstlane_b32 s{sW}, v{vT1}")
    e(f"s_and_b32 s{sNS}, s2, 7")
    e(f"s_lshr_b32 s{sMT}, s2, 3")
    e(f"s_mov_b32 s{sIDX+2}, 425984")
    e(f"s_mov_b32 s{sIDX+3}, 0x00020000")
    e(f"s_mov_b32 s{sTAB+2}, 256000")
    e(f"s_mov_b32 s{sTAB+3}, 0x00020000")
    e(f"s_mov_b32 s{sW1+2}, 3407872")
    e(f"s_mov_b32 s{sW1+3}, 0x00020000")
    e(f"s_mul_i32 s{sT1}, s{sW}, 3328")
    e(f"s_add_u32 m0, s{sT1}, {IDX_OFF}")
    e(f"s_mul_i32 s{sT2}, s{sMT}, 13312")
    e(f"s_add_u32 s{sT2}, s{sT2}, s{sT1}")
    e(f"v_lshlrev_b32 v{vT2}, 4, v{vL}")
    e(f"s_lshl_b32 s{sT3}, s{sNS}, 7")
    e(f"v_and_b32 v{vT3}, 7, v{vL}")
    e(f"v_lshlrev_b32 v{vXs}, 8, v{vT3}")
    e(f"s_lshl_b32 s{sPT}, s{sMT}, 13")
    e(f"s_lshl_b32 s{sD2}, s{sW}, 11")
    e(f"s_add_u32 s{sPT}, s{sPT}, s{sD2}")
    e(f"s_mul_i32 s{sMa}, s{sMT}, 24")
    e(f"s_mul_i32 s{sMb}, s{sW}, 6")
    e(f"s_add_u32 s{sMa}, s{sMa}, s{sMb}")
    e(f"v_min_u32 v{vT4}, 5, v{vL}")
    e(f"v_add_u32 v{vT4}, s{sMa}, v{vT4}")
    e(f"v_lshrrev_b32 v{vPB}, 5, v{vT4}")
    e(f"v_and_b32 v{vT4}, 31, v{vT4}")
    e(f"v_lshlrev_b32 v{vT4}, 10, v{vT4}")
    e(f"v_lshl_add_u32 v{vT4}, v{vPB}, 17, v{vT4}")
    e(f"v_lshrrev_b32 v{vT1}, 2, v{vL}")
    e(f"v_lshlrev_b32 v{vD[0]}, 8, v{vT1}")
    e(f"v_and_b32 v{vT1}, 3, v{vL}")
    e(f"v_lshl_add_u32 v{vD[0]}, v{vT1}, 4, v{vD[0]}")
    for j in range(1, 4): e(f"v_add_u32 v{vD[j]}, {j*3056}, v{vD[0]}")
    e(f"s_lshl_b32 s{sT1}, s{sW}, 4")
    e(f"s_min_u32 s{sT1}, s{sT1}, 47")
    e(f"s_mul_i32 s{sDM0}, s{sT1}, 1040")
    e(f"s_lshl_b32 s{sDSO}, s{sT1}, 12")
    e("s_waitcnt lgkmcnt(0)")
    g.stamp("karg")
    PF = opt.get("pf", 15)
    if PF & 1: g.vmem(f"buffer_load_dword v{vPf}, v{vXs}, s[{sTAB}:{sTAB+3}], s{sPT} offen")
    if PF & 2: g.vmem(f"buffer_load_dword v{vPf}, v{vT4}, s[{sW1}:{sW1+3}], s{sT3} offen")
    for j in range(4):
        if j == 3: e("s_mov_b64 exec, 0xffff")
        g.vmem(f"buffer_load_dwordx4 v{vT2}, s[{sIDX}:{sIDX+3}], s{sT2} offen{off(j*1024)} lds", tag="idx")
    e("s_mov_b64 exec, -1")
    e(f"s_load_dwordx4 s[{sWWv}:{sWWv+3}], s[{sWW}:{sWW+1}], 0")
    e(f"s_load_dwordx2 s[{sWWv+4}:{sWWv+5}], s[{sWW}:{sWW+1}], 16")
    e(f"s_load_dword s{sWWv+6}, s[{sWW}:{sWW+1}], 24")
    e(f"s_load_dword s{sWWv+7}, s[{sBW}:{sBW+1}], 0")
    e(f"s_load_dword s{sWWv+8}, s[{sB2}:{sB2+1}], 0")
    e(f"v_and_b32 v{vG}, 48, v{vL}")
    e(f"v_lshlrev_b32 v{vW1[0]}, 9, v{vG}")
    e(f"v_and_b32 v{vT1}, 8, v{vL}")
    e(f"v_lshl_add_u32 v{vW1[0]}, v{vT1}, 7, v{vW1[0]}")
    e(f"v_lshl_add_u32 v{vW1[0]}, v{vT3}, 4, v{vW1[0]}")
    e(f"s_mul_i32 s{sT1}, s{sW}, {6*131072}")
    e(f"s_add_u32 s{sT1}, s{sT1}, s{sT3}")
    e(f"v_add_u32 v{vW1[0]}, s{sT1}, v{vW1[0]}")
    e(f"v_add_u32 v{vW1[1]}, 4096, v{vW1[0]}")
    e(f"v_and_b32 v{vG}, 32, v{vL}")
    P01 = []
    for q in range(4):
        for jj in (0, 2):
            for c in (0, 1):
                for j in (jj, jj + 1):
                    def th(q=q, j=j, c=c, jj=jj):
                        if jj == 0 and c == 0 and j == 0:
                            e(f"s_add_u32 s{sMa}, s{sDM0}, {EVEN_OFF + q*4160}")
                            e(f"s_add_u32 s{sMb}, s{sDM0}, {ODD_OFF + q*4160}")
                            e(f"s_add_u32 s{sD2}, s{sDSO}, {q*16384}")
                            e(f"s_add_u32 s{sD3}, s{sDSO}, {q*16384 + 64}")
                        if j == jj:
                            e(f"s_mov_b32 m0, s{sMb if c else sMa}")
                            e("s_nop 0")
                        g.vmem(f"buffer_load_dwordx4 v{vD[j]}, s[{sTAB}:{sTAB+3}], s{sD3 if c else sD2} offen{off(j*1040)} lds", tag="p01")
                    P01.append(th)
    NP1 = opt.get("np1", 4)
    R0E = opt.get("r0e", -1)
    for i, th in enumerate(P01[:NP1]):
        if i == R0E:
            for kd in range(NL): w1_load(0, kd)
        th()
    if R0E == NP1:
        for kd in range(NL): w1_load(0, kd)
    e(f"v_mov_b32 v{vSel}, 0x05040100")
    e(f"v_mov_b32 v{vT4}, 0x03020706")
    e(f"v_cmp_ne_u32 vcc, 0, v{vT1}")
    e(f"s_mov_b32 s{s65}, 65")
    e(f"s_cmp_lt_u32 s{sW}, 2")
    e(f"v_cndmask_b32 v{vSel}, v{vSel}, v{vT4}, vcc")
    e(f"s_cselect_b32 s{sT1}, {EVEN_OFF}, {ODD_OFF}")
    e(f"v_add_u32 v{vGx}, s{sT1}, v{vG}")
    e(f"v_min_u32 v{vPB}, 25, v{vL}")
    e(f"v_lshlrev_b32 v{vPB}, 10, v{vPB}")
    e(f"s_mul_i32 s{sPB}, s{sMT}, 104")
    e(f"s_mul_i32 s{sT1}, s{sW}, 26")
    e(f"s_add_u32 s{sPB}, s{sPB}, s{sT1}")
    e(f"s_lshl_b32 s{sPB}, s{sPB}, 10")
    e(f"s_add_u32 s{sPB}, s{sPB}, s{sT3}")
    e(f"v_lshlrev_b32 v{vBW}, 1, v{vG}")
    e(f"v_add_u32 v{vBW}, s{sT3}, v{vBW}")
    e(f"s_and_b32 s{sT1}, s{sW}, 1")
    e(f"s_add_u32 s{sT1}, s{sT1}, 24")
    e(f"s_mul_i32 s{sXO}, s{sW}, 6")
    e(f"s_sub_u32 s{sXO}, s{sT1}, s{sXO}")
    e(f"s_lshl_b32 s{sT3}, s{sXO}, 2")
    e(f"s_lshl_b32 s{sXO}, s{sXO}, 17")
    e(f"s_lshr_b32 s{sT1}, s{sW}, 1")
    e(f"s_lshl_b32 s{sT1}, s{sT1}, 15")
    e(f"s_add_u32 s{sXO}, s{sXO}, s{sT1}")
    e(f"v_and_b32 v{vT4}, 31, v{vL}")
    e(f"v_mul_u32_u24 v{vT1}, 104, v{vT4}")
    e(f"s_mul_i32 s{sT1}, s{sW}, 24")
    e(f"s_add_u32 s{sT1}, s{sT1}, {IDX_OFF}")
    e(f"v_add_u32 v{vT1}, s{sT1}, v{vT1}")
    for a in range(4):
        e(f"s_add_u32 s{sT1}, s{sW}, {a+1}")
        e(f"s_and_b32 s{sT1}, s{sT1}, 3")
        e(f"s_mul_i32 s{sT2}, s{sT1}, 3328")
        e(f"v_add_u32 v{XR+a}, s{sT2}, v{vT1}")
        if a < 3:
            e(f"s_lshl_b32 s{sT1}, s{sT1}, 13")
            e(f"s_add_u32 s{sT1}, s{sT1}, {RED + a*32768}")
            e(f"v_add_u32 v{vRW[a]}, s{sT1}, v{vT2}")
    e(f"s_lshl_b32 s{sT1}, s{sW}, 13")
    e(f"s_add_u32 s{sT1}, s{sT1}, {RED}")
    e(f"v_add_u32 v{vRR0}, s{sT1}, v{vT2}")
    e(f"v_add_u32 v{vRR1}, 0x10000, v{vRR0}")
    for a in range(4): e(f"v_add_u32 v{W2P+a}, s{sT3}, v{XR+a}")
    e(f"v_add_u32 v{vWrO}, s{sDM0}, v{vT2}")
    e(f"v_add_u32 v{vWrE}, {EVEN_OFF}, v{vWrO}")
    e(f"s_lshl_b32 s{sT1}, s{sMT}, 7")
    e(f"s_lshl_b32 s{sT2}, s{sW}, 5")
    e(f"s_add_u32 s{sT1}, s{sT1}, s{sT2}")
    e(f"v_add_u32 v{vT4}, s{sT1}, v{vT4}")
    e(f"v_lshlrev_b32 v{vAt}, 3, v{vT4}")
    e(f"v_mov_b32 v{vZ0}, 0")
    e(f"v_mov_b32 v{vZ0+1}, 0")
    e(f"s_or_b32 s{sT1}, s{sNS}, s{sW}")
    e(f"s_cmp_eq_u32 s{sT1}, 0")
    e(f"s_cselect_b32 s{sRole}, 1, 0")
    e(f"s_cmp_eq_u32 s{sNS}, 0")
    e(f"s_cselect_b32 s{sWm}, -1, 0")
    g.stamp("iss")
    g.waitvm("idx")
    e("s_barrier")
    g.stamp("idx")
    for a in range(4):
        b = AD0 + 8 * a
        e(f"ds_read2_b64 {vr(b)}, v{XR+a} offset0:0 offset1:1")
        e(f"ds_read_b64 {vr(b+4,2)}, v{XR+a} offset:16")
        e(f"ds_read_b32 v{b+6}, v{W2P+a}")
    NP2 = opt.get("np2", 8)
    for th in P01[NP1:NP2]: th()
    g.waitl0()
    g.stamp("lidx")
    V = []
    for f in range(7):
        for a in range(4):
            V.append(lambda f=f, a=a: e(f"v_mad_u32_u24 v{AD(f,a)}, v{AD(f,a)}, s{s65}, v{vGx if f == 6 else vG}"))
        for a in range(4):
            V.append(lambda f=f, a=a: e(f"v_and_b32 v{AD(f,a)}, -16, v{AD(f,a)}"))
    R0P = opt.get("r0p", 12)
    M = P01[NP2:R0P] + [lambda kd=kd: w1_load(0, kd) for kd in range(NL if R0E < 0 else 0)] + P01[R0P:] + [lambda s=s, kd=kd: w1_load(s, kd) for s in (1, 2) for kd in range(NL)]
    per = opt.get("per", 4)
    vi = 0
    for th in M:
        th()
        for fn in V[vi:vi + per]: fn()
        vi += per
    for fn in V[vi:]: fn()
    if opt.get("xE"):
        for f in range(7):
            for a in range(4): e(f"v_lshlrev_b32 v{AD(f,a)}, {4 if opt['xE']==1 else 5}, v{vL}")
    for fn in xf_ops(0): fn()
    g.stamp("f0")
    g.waitvm("p01")
    e("s_barrier")
    g.stamp("p01")

    mf = []
    for s in range(22):
        for a in range(4):
            for kh in range(2):
                for t in range(2): mf.append((s, a, t, kh))
    for a in range(4):
        for t in ((1, 0) if a == 2 else (0, 1)):
            for s in range(22, 26):
                for kh in range(2): mf.append((s, a, t, kh))
    pre = [[] for _ in range(NK + 1)]
    post = [[] for _ in range(NK)]
    for a in range(4):
        for kh in range(2): e_read(0, a, kh)
    g.stamp("s0")
    BAR12 = opt.get("bar12", 4); EW = opt.get("ew", 8)
    for k, (s, a, t, kh) in enumerate(mf):
        if s == 0: pre[k].append(lambda s=s, a=a, kh=kh: g.waitl(("E", s, a, kh)))
        elif s < 22:
            pass
        elif k % 16 < 8 and (k % 16) % (EW // 2) == 0:
            pre[k].append(lambda k=k: g.waitl(("E", mf[k + EW // 2 - 1][0], mf[k][1], mf[k + EW // 2 - 1][3])))
    for k in range(16, KT, EW):
        m = mf[k + EW - 1]
        pre[k].append(lambda m=m: g.waitl(("E", m[0], m[1], m[3])))
    pre[K(7, 0)].append(lambda: e("s_barrier"))
    def bar12():
        g.waitvm("c2dma"); g.waitl(("tw", 2)); g.waitl(("E", 12, 3, 1)); e("s_barrier")
    pre[K(12, BAR12)].append(bar12)
    def bar18():
        g.waitl(("tw", 3)); e("s_barrier")
    pre[K(18, 1)].append(bar18)
    pre[K(21, 0)].append(lambda: e("s_barrier"))
    for s in range(1, 22):
        for a in range(4):
            for kh in range(2):
                pos = K(s - 1, 4 * a + 2 * kh + 1)
                if s == 13 and pos < K(12, BAR12): pos = K(12, BAR12)
                post[pos].append(lambda s=s, a=a, kh=kh: e_read(s, a, kh))
    for a in range(4):
        for i in range(8):
            post[KT + 16 * (a - 1) + 2 * i + (1 if a == 0 else 0)].append(lambda a=a, i=i: e_read(22 + (i >> 1), a, i & 1))
    FLEX = []
    for n in range(1, NS): FLEX.append((bw0[n], bw1[n], xf_ops(n)))
    NC2A = 9
    def t_load(p, c):
        if opt.get("xC"):
            g.tags[("t", p, c)] = 0; g.tags["c2dma"] = 0; return
        q, j = p >> 2, p & 3
        if c == 2: e(f"s_add_u32 s{sD2}, s{sDSO}, {q*16384 + 128}")
        if c == 2 and p >= NC2A:
            e(f"s_add_u32 m0, s{sDM0}, {EVEN_OFF + q*4160}")
            e("s_nop 0")
            g.vmem(f"buffer_load_dwordx4 v{vD[j]}, s[{sTAB}:{sTAB+3}], s{sD2} offen{off(j*1040)} lds", tag="c2dma")
        else:
            r = (C2A if c == 2 else C3A) + 4 * p
            g.vmem(f"buffer_load_dwordx4 {ar(r)}, v{vD[j]}, s[{sTAB}:{sTAB+3}], s{sD2} offen{off(j*1040 + (64 if c == 3 else 0))}", tag=("t", p, c))
    def t_write(p, c):
        g.waitvm(("t", p, c))
        if opt.get("xT"):
            g.ltags[("tw", c)] = g.lg; return
        r = (C2A if c == 2 else C3A) + 4 * p
        g.lds(f"ds_write_b128 v{vWrE if c == 2 else vWrO}, {ar(r)}{off(p*1040)}", tag=("tw", c))
    for n in range(3, NS):
        for kd in range(NL): post[rp[n][kd]].append(lambda n=n, kd=kd: w1_load(n, kd))
    tp = []
    for s in range(1, 11): tp += [K(s, 3), K(s, 11)] if s % 2 else [K(s, 10)]
    tp.append(K(11, 1))
    if opt.get("tl") == 2:
        tp = [K(2, 3), K(2, 11), K(3, 7), K(4, 3), K(4, 11), K(5, 7), K(6, 3), K(6, 9), K(6, 15), K(7, 7), K(8, 3), K(8, 11), K(9, 7), K(10, 3), K(10, 11), K(11, 3)]
    if opt.get("tl") == 1:
        tp = [K(3, 3), K(3, 11), K(4, 7), K(5, 1), K(5, 7), K(5, 13), K(6, 3), K(6, 9), K(6, 15), K(7, 5), K(7, 13), K(8, 5), K(8, 13), K(9, 7), K(10, 1), K(10, 11)]
    assert len(tp) == 16 and tp[NC2A - 1] < K(7, 0) <= tp[NC2A]
    TS = opt.get("ts", 0)
    for p in range(16):
        post[tp[p]].append(lambda p=p: t_load(p, 2))
        post[tp[p] + TS].append(lambda p=p: t_load(p, 3))
    if PF & 4: post[opt.get("pk4", 2)].append(lambda: g.vmem(f"buffer_load_dword v{vPf}, v{vXs}, s[{sTAB}:{sTAB+3}], s{sPT} offen offset:128"))
    if PF & 8: post[opt.get("pk8", 3)].append(lambda: g.vmem(f"buffer_load_dword v{vPf}, v{vPB}, s[{sW1}:{sW1+3}], s{sPB} offen"))
    wl = [(7, 4), (7, 12), (8, 4), (8, 12), (9, 4), (9, 12), (10, 4), (10, 12), (11, 4)]
    for p in range(NC2A): post[K(*wl[p])].append(lambda p=p: t_write(p, 2))
    wl = [(12, 7), (12, 11), (12, 15)] + [(s, i) for s in range(13, 17) for i in (3, 7, 11)] + [(17, 3)]
    for p in range(16): post[K(*wl[p])].append(lambda p=p: t_write(p, 3))
    def guard(fn):
        def w():
            a, b = g.vdone, g.ldone
            fn()
            g.vdone, g.ldone = a, b
        return w
    def claim():
        e(f"s_cmp_eq_u32 s{sRole}, 0")
        e("s_cbranch_scc1 L_NOC")
        e(f"s_lshl_b32 s{sT1}, s{sMT}, 2")
        e(f"v_mov_b32 v{vT2}, s{sT1}")
        e(f"v_mov_b32 v{vClaim}, 1")
        e("s_mov_b64 exec, 1")
        e(f"global_atomic_add v{vClaim}, v{vT2}, v{vClaim}, s[{sDBG}:{sDBG+1}] sc0 sc1")
        e("s_mov_b64 exec, -1")
        g.lab("L_NOC")
        g.mark("claim")
    post[K(0, 14)].append(claim)
    def swap():
        e(f"s_cmp_eq_u32 s{sRole}, 0")
        e("s_cbranch_scc1 L_NOW")
        g.waitvm("claim", force=True)
        e(f"v_readfirstlane_b32 s{sT1}, v{vClaim}")
        e(f"s_cmp_lg_u32 s{sT1}, 0")
        e(f"s_cselect_b32 s{sRole}, 0, 1")
        e("s_cbranch_scc1 L_NOW")
        e(f"s_lshl_b32 s{sT1}, s{sMT}, 10")
        e(f"v_lshlrev_b32 v{vT2}, 3, v{vL}")
        e(f"v_add_u32 v{vT2}, s{sT1}, v{vT2}")
        e(f"global_atomic_swap_x2 {vr(XR,2)}, v{vT2}, {vr(vZ0,2)}, s[{sWS}:{sWS+1}] sc0 sc1")
        e(f"global_atomic_swap_x2 {vr(XR+2,2)}, v{vT2}, {vr(vZ0,2)}, s[{sWS}:{sWS+1}] offset:512 sc0 sc1")
        g.lab("L_NOW")
        g.mark("swap")
    post[K(4, 14)].append(guard(swap))
    def flag():
        e(f"s_cmp_eq_u32 s{sRole}, 0")
        e("s_cbranch_scc1 L_NOF")
        g.waitvm("swap", force=True)
        e(f"s_lshl_b32 s{sT1}, s{sMT}, 2")
        e(f"v_mov_b32 v{vT2}, s{sT1}")
        e(f"v_mov_b32 v{vT3}, 1")
        e("s_mov_b64 exec, 1")
        e(f"global_store_dword v{vT2}, v{vT3}, s[{sDBG}:{sDBG+1}] offset:128 sc0 sc1")
        e("s_mov_b64 exec, -1")
        g.lab("L_NOF")
    post[K(9, 14)].append(guard(flag))
    for r in range(4):
        post[K(opt.get("b1s", 3) - 3, 4 + 2 * r)].append(lambda r=r: g.vmem(f"global_load_dwordx4 {vr(W2P+4*r)}, v{vBW}, s[{sB1}:{sB1+1}]{off(16*r)}", tag="b1"))
        post[K(20, 2 + 4 * r)].append(lambda r=r: g.vmem(f"global_load_dwordx4 {vr(W2P+4*r)}, v{vBW}, s[{sW2}:{sW2+1}]{off(16*r)}", tag="w2"))
    def xload():
        e(f"v_lshrrev_b32 v{vT2}, 3, v{vAt}")
        e(f"v_mul_u32_u24 v{vT2}, 26, v{vT2}")
        e(f"v_and_b32 v{vT2}, -4, v{vT2}")
        g.vmem(f"global_load_dwordx4 {vr(XR)}, v{vT2}, s[{sX_}:{sX_+1}]")
        g.vmem(f"global_load_dwordx3 {vr(XR+4,3)}, v{vT2}, s[{sX_}:{sX_+1}] offset:16", tag="x")
    post[K(19, 0)].append(xload)
    def rdflag():
        e(f"s_lshl_b32 s{sT1}, s{sMT}, 2")
        e(f"v_mov_b32 v{vT3}, s{sT1}")
        g.vmem(f"global_load_dword v{vFlag}, v{vT3}, s[{sDBG}:{sDBG+1}] offset:128 sc1", tag="flag")
    post[K(23, 3)].append(rdflag)
    def spread(ops, k0, k1):
        for i, fn in enumerate(ops): post[k0 + (i * (k1 - k0)) // len(ops)].append(fn)
    B1S = opt.get("b1s", 3)
    for q in range(4):
        ops = []
        t = q >> 1
        for r in range(8 * (q & 1), 8 * (q & 1) + 4):
            d = W2P + DI(t, r); h = OWN0 + 16 * t + r
            ops.append(lambda d=d: (g.waitvm("b1"), e(f"v_lshlrev_b32 v{vT1}, 16, v{d}")))
            ops.append(lambda d=d: e(f"v_and_b32 v{d}, 0xffff0000, v{d}"))
            ops.append(lambda h=h: e(f"v_add_f32 v{h}, v{h}, v{vT1}"))
            ops.append(lambda h=h, d=d: e(f"v_add_f32 v{h+4}, v{h+4}, v{d}"))
        FLEX.append((K(B1S + q, 1), K(B1S + q, 11), ops))
    XX = [XR + i for i in range(7)]
    ops = [lambda: g.waitvm("x"),
           lambda: e(f"v_and_b32 v{vXs}, 1, v{vL}"), lambda: e(f"v_lshlrev_b32 v{vXs}, 4, v{vXs}"),
           lambda: e(f"s_lshl_b32 s{sT1}, s{sWWv+7}, 16"), lambda: e(f"s_lshl_b32 s{sT2}, s{sWWv+8}, 16"),
           lambda: e(f"v_mov_b32 v{vWide}, s{sT1}"), lambda: e(f"v_add_f32 v{vWide}, s{sT2}, v{vWide}"),
           lambda: e(f"s_and_b32 s{sWWv+6}, s{sWWv+6}, 0xffff")]
    for i in range(6): ops.append(lambda i=i: e(f"v_alignbit_b32 v{XX[i]}, v{XX[i+1]}, v{XX[i]}, v{vXs}"))
    ops.append(lambda: e(f"v_bfe_u32 v{XX[6]}, v{XX[6]}, v{vXs}, 16"))
    for i in range(7): ops.append(lambda i=i: e(f"v_dot2_f32_bf16 v{vWide}, v{XX[i]}, s{sWWv+i}, v{vWide}"))
    FLEX.append((KT, KT + 20, ops))
    post[KT + 22].append(lambda: e(f"v_and_b32 v{vAcc}, s{sWm}, v{vWide}"))
    post[KT + 23].append(lambda: (e(f"v_mul_f32 v{vAcc}, 0.5, v{vAcc}"), e(f"v_mov_b32 v{vT4}, 0")))
    WS = opt.get("ws", 2)
    def CT(c): return (c >> 1, (c & 1) ^ (c >= 4))
    for c in range(6):
        a, t = CT(c)
        for i in range(4):
            if opt.get("xR", 0) & 1: g.ltags[("rw", c)] = 0; continue
            post[KT + 8 * c + 9 + WS * i].append(lambda a=a, t=t, i=i, c=c: g.lds(f"ds_write_b128 v{vRW[a]}, {ar(ACCB(a,t)+4*i)}{off((4*t+i)*1024)}", tag=("rw", c)))
    def rbar(c):
        def f():
            g.waitl(("rw", c))
            if not opt.get("xR", 0) & 2: e("s_barrier")
        return f
    def rread(c, k0, per=1):
        a, t = CT(c)
        for i in range(4):
            base, o = (vRR0, a * 32768 + (4*t+i) * 1024) if a < 2 else (vRR1, (4*t+i) * 1024)
            post[k0 + i // per].append(lambda i=i, base=base, o=o, t=t, c=c: g.lds(f"ds_read_b128 {vr(P[t]+4*i)}, v{base}{off(o)}", tag=("rr", c, i)))
    def radd(c, k0, k1):
        t = CT(c)[1]; ops = []
        for i in range(16):
            def f(i=i):
                if i % 8 == 0: g.waitl(("rr", c, i // 4 + 1))
                e(f"v_add_f32 v{OWN0+16*t+i}, v{OWN0+16*t+i}, v{P[t]+i}")
            ops.append(f)
        FLEX.append((k0, k1, ops))
    BD = opt.get("bd", 3)
    def BK(c): return KT + 8 * c + 9 + 3 * WS + BD
    pre[BK(1)].append(rbar(1)); rread(0, BK(1)); rread(1, BK(1) + 4); radd(0, BK(1) + 5, BK(1) + 10); radd(1, BK(1) + 9, BK(3))
    pre[BK(2)].append(rbar(2)); rread(2, BK(1) + 10); radd(2, BK(1) + 15, KT + 48)
    pre[BK(3)].append(rbar(3)); rread(3, BK(3), 2); radd(3, BK(3) + 3, BK(4))
    pre[BK(4)].append(rbar(4)); rread(4, BK(4), 2); radd(4, BK(4) + 3, KT + 56)
    pre[BK(5)].append(rbar(5)); rread(5, BK(5), 2); radd(5, BK(5) + 3, KT + 64)
    def fin(t):
        ops = []; h = OWN0 + 16 * t
        R = (0, 1, 2, 3, 8, 9, 10, 11)
        for r in R: ops.append(lambda r=r: e(f"v_cvt_pk_bf16_f32 v{h+r}, v{h+r}, v{h+r+4}"))
        for r in R: ops.append(lambda r=r: e(f"v_pk_max_i16 v{h+r}, v{h+r}, 0"))
        for r in R:
            A = vAcc if r & 1 else vT4
            ops.append(lambda r=r, A=A: e(f"v_dot2_f32_bf16 v{A}, v{h+r}, v{W2P + DI(t, r)}, v{A}"))
        return ops
    post[KT + 57].append(lambda: (g.waitvm("flag"), e(f"v_readfirstlane_b32 s{sT1}, v{vFlag}"), e(f"s_mov_b32 s{sT2}, 0x49000000"), e(f"s_mov_b32 s{sT3}, 0xc9000000")))
    def cost(line):
        w = line.split()
        if not w or line.endswith(":"): return 0
        op = w[0]
        if op == "s_nop": return 4 * (int(w[1]) + 1)
        if op.startswith("ds_write_b128"): return opt.get("cw", 16)
        if op.startswith("v_dot2"): return 12
        if op.startswith("v_permlane"): return opt.get("cs", 8)
        if op.startswith("buffer_load") or op.startswith("global_load"): return opt.get("cv", 4)
        if op.startswith("v_mfma"): return 0
        return 4
    import copy
    def measure():
        sv = (len(g.o), g.vm, g.lg, dict(g.tags), dict(g.ltags), g.vdone, g.ldone)
        c = []
        for k in range(NK):
            n0 = len(g.o)
            for fn in post[k]: fn()
            for fn in pre[k + 1]: fn()
            c.append(sum(cost(x) for x in g.o[n0:]))
        del g.o[sv[0]:]
        _, g.vm, g.lg, g.tags, g.ltags, g.vdone, g.ldone = sv
        return c
    def opcost(fn):
        sv = (len(g.o), g.vm, g.lg, dict(g.tags), dict(g.ltags), g.vdone, g.ldone)
        g.vdone = 10**9; g.ldone = 10**9
        class D(dict):
            def __missing__(s, k): return 0
        g.tags = D(); g.ltags = D()
        fn()
        c = sum(cost(x) for x in g.o[sv[0]:])
        del g.o[sv[0]:]
        _, g.vm, g.lg, g.tags, g.ltags, g.vdone, g.ldone = sv
        return c
    load = measure()
    for k0, k1, ops in sorted(FLEX, key=lambda x: (x[1] - x[0]) / len(x[2])):
        cs = [opcost(fn) for fn in ops]
        for lvl in range(4, 200, 2):
            k = k0; asg = []; cur = load[k]
            for c_ in cs:
                while k < k1 and cur + c_ > lvl:
                    k += 1; cur = load[k] if k < k1 else 0
                if k >= k1: break
                asg.append(k); cur += c_
            if len(asg) == len(cs): break
        for fn, k, c_ in zip(ops, asg, cs):
            post[k].append(fn); load[k] += c_
    load = measure()
    if opt.get("rep"):
        for s_ in range(NS): print(s_, load[16*s_:16*s_+16], sum(max(32, 8 + x) for x in load[16*s_:16*s_+16]))
    for k, (s, a, t, kh) in enumerate(mf):
        for fn in pre[k]: fn()
        c = "0" if (s == 0 and kh == 0) else ACC(a, t)
        rd = set(range(F(s, 2*t+kh), F(s, 2*t+kh) + 4)) | (set(range(OWN0 + 16*t, OWN0 + 16*t + 16)) if a == 3 else set())
        for d in (1, 2):
            w = g.o[-d].replace(",", " ").split()
            if w[0].startswith("v_") and not w[0].startswith("v_mfma") and w[1][0] == "v" and w[1][1:].isdigit() and int(w[1][1:]) in rd:
                e(f"s_nop {2 - d}"); print("hazard nop at", k); break
        e(f"v_mfma_f32_32x32x16_bf16 {ACC(a,t)}, {vr(F(s, 2*t+kh))}, {ar(ereg(s, a, kh))}, {c}")
        n0 = len(g.o)
        for fn in post[k]: fn()
        if k % 16 == 15: g.stamp(f"s{k//16+1}")
    g.waitvm("w2")
    for fn in fin(0): fn()
    for fn in fin(1): fn()
    e(f"s_cmp_eq_u32 s{sT1}, 0")
    e("s_nop 1")
    e(f"v_add_f32 v{vT1}, v{vAcc}, v{vT4}")
    e(f"v_add_f32 v{vT2}, v{vAcc}, v{vT4}")
    e("s_nop 1")
    e(f"v_permlane32_swap_b32 v{vT1}, v{vT2}")
    e(f"v_add_f32 v{vT1}, v{vT1}, v{vT2}")
    e(f"v_min_f32 v{vT1}, s{sT2}, v{vT1}")
    e(f"v_max_f32 v{vT1}, s{sT3}, v{vT1}")
    e(f"v_floor_f32 v{vT2}, v{vT1}")
    e(f"v_sub_f32 v{vT3}, v{vT1}, v{vT2}")
    e(f"v_cvt_i32_f32 v{T0+1}, v{vT2}")
    e(f"v_mul_f32 v{vT3}, 0x4f800000, v{vT3}")
    e(f"v_add_u32 v{T0+1}, 0x1000000, v{T0+1}")
    e(f"v_cvt_u32_f32 v{T0}, v{vT3}")
    g.stamp("red")
    e("s_cbranch_scc1 L_SLOW")
    g.lab("L_GO")
    e("s_mov_b32 exec_lo, -1")
    e("s_mov_b32 exec_hi, 0")
    e(f"global_atomic_add_x2 {vr(T0+2,2)}, v{vAt}, {vr(T0,2)}, s[{sWS}:{sWS+1}] sc0 sc1")
    e(f"v_lshrrev_b32 v{vAt}, 2, v{vAt}")
    e("s_waitcnt vmcnt(0)")
    g.stamp("atom")
    e(f"v_add_co_u32 v{T0}, vcc, v{T0}, v{T0+2}")
    e(f"v_add_u32 v{vT1}, 0x800000, v{T0+3}")
    e(f"v_lshrrev_b32 v{vT1}, 24, v{vT1}")
    e(f"v_addc_co_u32 v{T0+1}, vcc, v{T0+1}, v{T0+3}, vcc")
    e(f"v_cmp_eq_u32 vcc, 7, v{vT1}")
    e(f"v_cvt_f32_u32 v{T0}, v{T0}")
    e(f"v_subrev_u32 v{T0+1}, 0x8000000, v{T0+1}")
    e(f"v_cvt_f32_i32 v{T0+1}, v{T0+1}")
    e("s_and_b64 exec, exec, vcc")
    e("s_cbranch_execz L_FIN")
    e(f"v_fmac_f32 v{T0+1}, 0x2f800000, v{T0}")
    e(f"v_mul_f32 v{T0+1}, 0xbfb8aa3b, v{T0+1}")
    e(f"v_exp_f32 v{T0+1}, v{T0+1}")
    e("s_nop 0")
    e(f"v_add_f32 v{T0+1}, 1.0, v{T0+1}")
    e(f"v_rcp_f32 v{T0+1}, v{T0+1}")
    e("s_nop 0")
    e(f"v_cvt_pk_bf16_f32 v{T0+1}, v{T0+1}, v{T0+1}")
    e(f"global_store_short v{vAt}, v{T0+1}, s[{sOUT}:{sOUT+1}]")
    g.lab("L_FIN")
    if opt.get("stamp"):
        e("s_mov_b64 exec, -1")
        e(f"s_memrealtime s[{ST0+14}:{ST0+15}]")
        e("s_waitcnt lgkmcnt(0)")
        e(f"s_cmp_lg_u32 s{sW}, 0")
        e("s_cbranch_scc1 L_END")
        e("s_mov_b64 exec, 1")
        e("s_lshl_b32 s3, s2, 6")
        e("s_add_u32 s3, s3, 0x200000")
        e("v_mov_b32 v2, s3")
        for i in range(16): e(f"v_mov_b32 v{4+i}, s{ST0+i}")
        for i in range(4): e(f"global_store_dwordx4 v2, v[{4+4*i}:{7+4*i}], s[{sWS}:{sWS+1}] offset:{16*i}")
    g.lab("L_END")
    e("s_endpgm")
    g.lab("L_SLOW")
    e(f"s_lshl_b32 s{sT1}, s{sMT}, 2")
    e(f"v_mov_b32 v{vT2}, s{sT1}")
    e(f"v_mov_b32 v{vClaim}, 1")
    e("s_mov_b64 exec, 1")
    e(f"global_atomic_add v{vClaim}, v{vT2}, v{vClaim}, s[{sDBG}:{sDBG+1}] sc0 sc1")
    e("s_waitcnt vmcnt(0)")
    e(f"v_readfirstlane_b32 s{sT1}, v{vClaim}")
    e(f"s_cmp_lg_u32 s{sT1}, 0")
    e("s_cbranch_scc1 L_SPIN")
    e("s_mov_b64 exec, -1")
    e(f"s_lshl_b32 s{sT1}, s{sMT}, 10")
    e(f"v_lshlrev_b32 v{vT3}, 3, v{vL}")
    e(f"v_add_u32 v{vT3}, s{sT1}, v{vT3}")
    e(f"global_atomic_swap_x2 {vr(XR,2)}, v{vT3}, {vr(vZ0,2)}, s[{sWS}:{sWS+1}] sc0 sc1")
    e(f"global_atomic_swap_x2 {vr(XR+2,2)}, v{vT3}, {vr(vZ0,2)}, s[{sWS}:{sWS+1}] offset:512 sc0 sc1")
    e(f"v_mov_b32 v{vT3}, 1")
    e("s_waitcnt vmcnt(0)")
    e("s_mov_b64 exec, 1")
    e(f"global_store_dword v{vT2}, v{vT3}, s[{sDBG}:{sDBG+1}] offset:128 sc0 sc1")
    e("s_branch L_GO")
    g.lab("L_SPIN")
    e(f"global_atomic_or v{vClaim}, v{vT2}, v{vZ0}, s[{sDBG}:{sDBG+1}] offset:128 sc0 sc1")
    e("s_waitcnt vmcnt(0)")
    e(f"v_readfirstlane_b32 s{sT1}, v{vClaim}")
    e(f"s_cmp_lg_u32 s{sT1}, 0")
    e("s_cbranch_scc1 L_GO")
    e("s_sleep 8")
    e("s_branch L_SPIN")

    ref = open(REF).read().split("\n")
    hdr = []
    for ln in ref:
        if ln.startswith("; @launch"):
            hdr.append(f"; @launch grid=(256,1,1) block=(256,1,1) lds={LDS_BYTES}"); break
        hdr.append(ln)
    hdr += ['.amdgcn_target "amdgcn-amd-amdhsa--gfx950"', ".text", f".globl {KN}", ".p2align 8", f".type {KN},@function", f"{KN}:"]
    ftr = ['.section .rodata,"a"', ".p2align 6", f".amdhsa_kernel {KN}",
           "  .amdhsa_next_free_vgpr 512", "  .amdhsa_next_free_sgpr 102", "  .amdhsa_accum_offset 256",
           "  .amdhsa_group_segment_fixed_size 0", "  .amdhsa_kernarg_size 96", "  .amdhsa_user_sgpr_count 2",
           "  .amdhsa_user_sgpr_kernarg_segment_ptr 1", "  .amdhsa_system_sgpr_workgroup_id_x 1", ".end_amdhsa_kernel", ""]
    return "\n".join(hdr + g.o + ftr)

if __name__ == "__main__":
    opt = {}
    for a in sys.argv[2:]:
        k, v = a.split("="); opt[k] = v.split(",") if k == "stamp" else int(v)
    open(sys.argv[1], "w").write(gen(opt))
```

```python
import sys
KN = "standalone__deep_cross_wide_deep__recsys_kernel"
REF = "standalone__deep_cross_wide_deep__recsys.s.ref"

ODD_OFF = 0
EVEN_OFF = 65504
IDX_OFF = 131008
RED = 65504
LDS_BYTES = 163840

vWrO, vL, vG, vGx, vW1a, vW1b, vSel, vBW = 0, 1, 2, 3, 4, 5, 6, 7
vD = [8, 9, 10, 11]
vRW = [12, 13, 14]
vRR0 = 15
AD0 = 16
BLK0 = 48
NBLK = 8
OWN0 = 176
W2P = 208
XR = 224
T0 = 232
vRR1, vWide, vFlag, vAt, vPf, vClaim = 236, 237, 238, 239, 240, 241
vT1, vT2, vT3, vT4 = 242, 243, 244, 245
vZ0 = 246
vWrE, vAcc, vXs, vPB = 248, 249, 250, 251
EB = [96, 128]
C3A = 128
C2A = 192
B1A = 240
sIDX, sTAB, sW1 = 28, 32, 36
sX_, sWW, sBW, sB1, sW2, sB2, sOUT, sDBG, sWS = 8, 10, 12, 16, 18, 20, 22, 24, 26
sW, sNS, sMT, sK, sXO, sDM0, sDSO, s65, sT1, sT2, sT3, sRole, sD2, sD3, sMa, sMb, sPT, sPB, sWm = 3, 4, 5, 6, 7, 40, 41, 42, 43, 44, 45, 46, 47, 48, 49, 50, 51, 52, 53
sWWv = 64
sSel0, sSel1 = 54, 55
vW1 = [4, 5, 232, 233]
ST0 = 80

def AD(f, a): return AD0 + 8 * a + f
def vr(b, n=4): return f"v[{b}:{b+n-1}]"
def ar(b, n=4): return f"a[{b}:{b+n-1}]"
def ACCB(a, t): return (a * 2 + t) * 16
def ACC(a, t): return ar(ACCB(a, t), 16) if a < 3 else vr(OWN0 + 16 * t, 16)
def DI(t, r): return 4 * (r & 3) + 2 * t + (r >> 3)
def LI(r): return 8 * ((r >> 2) & 1) + 2 * (r & 3) + (r >> 3)
def off(x): return f" offset:{x}" if x else ""

class G:
    def __init__(s, opt):
        s.o = []; s.vm = 0; s.lg = 0; s.tags = {}; s.ltags = {}; s.opt = opt
        s.vdone = 0; s.ldone = 0
    def e(s, x): s.o.append("  " + x)
    def lab(s, x): s.o.append(x + ":")
    def vmem(s, x, tag=None):
        s.e(x); s.vm += 1
        if tag is not None: s.tags[tag] = s.vm
    def lds(s, x, tag=None):
        s.e(x); s.lg += 1
        if tag is not None: s.ltags[tag] = s.lg
    def mark(s, tag): s.tags[tag] = s.vm
    def waitvm(s, tag, force=False):
        t = s.tags[tag]
        if t <= s.vdone and not force: return
        n = min(s.vm - t, 63); s.vdone = max(s.vdone, s.vm - n)
        s.e(f"s_waitcnt vmcnt({n})")
    def waitl(s, tag):
        t = s.ltags[tag]
        if t <= s.ldone: return
        n = min(s.lg - t, 15); s.ldone = max(s.ldone, s.lg - n)
        s.e(f"s_waitcnt lgkmcnt({n})")
    def waitl0(s):
        s.ldone = s.lg; s.e("s_waitcnt lgkmcnt(0)")
    def stamp(s, name):
        L = s.opt.get("stamp")
        if L and name in L:
            i = 1 + L.index(name)
            s.e(f"s_memtime s[{ST0+2*i}:{ST0+2*i+1}]"); s.waitl0()

def stepinfo(s):
    h, r = divmod(s, 13)
    if r < 6: return (r, 2 * h)
    if r == 6: return (6, 2 * h)
    return (r - 7, 2 * h + 1)

def gen(opt):
    g = G(opt); e = g.e
    NS = 26; KT = 16 * 22; NK = 16 * NS
    def K(s, i): return 16 * s + i
    C0 = opt.get("c0", 13)
    bw0 = {}; bw1 = {}
    for n in range(1, C0): bw0[n] = 16 * (n - 1); bw1[n] = 16 * n - 2
    bw0[1] = opt.get("bw1", 5)
    span = KT - 2 - 16 * (C0 - 1)
    for n in range(C0, NS):
        bw0[n] = 16 * (C0 - 1) + ((n - C0) * span) // (NS - C0)
        bw1[n] = 16 * (C0 - 1) + ((n + 1 - C0) * span) // (NS - C0)
        assert bw1[n] <= 16 * n - 2
    rp = {}
    NL = 4
    for s in range(0, 11): rp[s + 3] = [K(s, 4 * i) for i in range(NL)]
    RD = opt.get("rd", 30)
    prev = K(10, 15)
    for n in range(14, NS):
        st = max(bw0[n] - RD, prev + 1)
        ln = bw1[n] - bw0[n]
        rp[n] = [st + (i * ln) // NL for i in range(NL)]; prev = rp[n][-1]
        assert prev < bw0[n] - 4, (n, prev, bw0[n])
    iv = []
    for n in range(NS):
        iv.append((("raw", n), rp[n][0] if n >= 3 else -1, bw1[n] - 1 if n else -1))
        iv.append((("F", n), bw0[n] if n else -2, 16 * n + 15 if n < 22 else NK))
    iv += [(("P", 0), KT + 24, NK), (("P", 1), KT + 24, NK)]
    iv.sort(key=lambda x: x[1])
    free = [-10] * NBLK; blk = {}
    for name, a, b in iv:
        c = [i for i in range(NBLK) if free[i] < a]
        assert c, (name, a, free)
        i = min(c, key=lambda i: free[i]); blk[name] = BLK0 + 16 * i; free[i] = b
    def RAW(s, i): return blk[("raw", s)] + 4 * i
    def F(s, j): return blk[("F", s)] + 4 * j
    P = [blk[("P", 0)], blk[("P", 1)]]

    def w1_load(s, i):
        f, c = stepinfo(s)
        if i == 0:
            if f < 6: e(f"s_mov_b32 s{sK}, {f*131072 + c*32768}")
            else: e(f"s_add_u32 s{sK}, s{sXO}, {c*32768}")
        g.vmem(f"buffer_load_dwordx4 {vr(RAW(s, i))}, v{vW1[i >> 1]}, s[{sW1}:{sW1+3}], s{sK} offen{off((i & 1) * 2048)}", tag=("raw", s, i))
    def ereg(s, a, kh):
        if s < 22: return EB[0] + 8 * a + 4 * kh
        return EB[(a + 1) & 1] + 8 * (s - 22) + 4 * kh
    def e_read(s, a, kh):
        f, c = stepinfo(s)
        o = (0 if f == 6 else (EVEN_OFF if c % 2 == 0 else ODD_OFF)) + 16 * kh
        if opt.get("xN") and s > 0:
            g.ltags[("E", s, a, kh)] = g.ldone; return
        g.lds(f"ds_read_b128 {ar(ereg(s, a, kh))}, v{AD(f, a)}{off(o)}", tag=("E", s, a, kh))
    WG = opt.get("wg", 2)
    def xf_ops(s):
        ops = []
        def mv(kd, j):
            if j == 0 and kd % WG == 0: g.waitvm(("raw", s, kd + WG - 1))
            e(f"v_mov_b32_dpp v{T0 + j}, v{RAW(s, kd) + j} row_ror:8 row_mask:0xf bank_mask:0xf")
        def pm(kd, j): e(f"v_perm_b32 v{F(s, j) + kd}, v{T0 + j}, v{RAW(s, kd) + j}, v{vSel}")
        def sw(kd, t, nop=False):
            if nop: e("s_nop 1")
            e(f"v_permlane16_swap_b32 v{F(s, 2*t) + kd}, v{F(s, 2*t+1) + kd}")
        for kd in range(4):
            for j in range(4):
                ops.append(lambda kd=kd, j=j: mv(kd, j))
                if j == 3: ops.append(lambda kd=kd: sw(kd, 0))
                ops.append(lambda kd=kd, j=j: pm(kd, j))
                if j == 0 and kd > 0: ops.append(lambda kd=kd: sw(kd - 1, 1))
        ops.append(lambda: sw(3, 1, True))
        return ops

    e("s_cmp_ge_u32 s2, 256")
    e("s_cbranch_scc1 L_END")
    e(f"s_load_dwordx2 s[{sIDX}:{sIDX+1}], s[0:1], 0")
    e(f"s_load_dwordx2 s[{sTAB}:{sTAB+1}], s[0:1], 8")
    e(f"s_load_dwordx2 s[{sW1}:{sW1+1}], s[0:1], 40")
    e(f"s_load_dwordx4 s[16:19], s[0:1], 48")
    e(f"s_load_dwordx4 s[8:11], s[0:1], 16")
    e(f"s_load_dwordx2 s[12:13], s[0:1], 32")
    e(f"s_load_dwordx8 s[20:27], s[0:1], 64")
    if opt.get("stamp"):
        e(f"s_memrealtime s[{ST0+12}:{ST0+13}]")
        e(f"s_memtime s[{ST0}:{ST0+1}]")
        for i in range(1, 6): e(f"s_mov_b64 s[{ST0+2*i}:{ST0+2*i+1}], 0")
    e(f"v_lshrrev_b32 v{vT1}, 6, v0")
    e(f"v_and_b32 v{vL}, 63, v0")
    e(f"v_readfirstlane_b32 s{sW}, v{vT1}")
    e(f"s_and_b32 s{sNS}, s2, 7")
    e(f"s_lshr_b32 s{sMT}, s2, 3")
    e(f"s_mov_b32 s{sIDX+2}, 425984")
    e(f"s_mov_b32 s{sIDX+3}, 0x00020000")
    e(f"s_mov_b32 s{sTAB+2}, 256000")
    e(f"s_mov_b32 s{sTAB+3}, 0x00020000")
    e(f"s_mov_b32 s{sW1+2}, 3407872")
    e(f"s_mov_b32 s{sW1+3}, 0x00020000")
    e(f"s_mul_i32 s{sT1}, s{sW}, 3328")
    e(f"s_add_u32 m0, s{sT1}, {IDX_OFF}")
    e(f"s_mul_i32 s{sT2}, s{sMT}, 13312")
    e(f"s_add_u32 s{sT2}, s{sT2}, s{sT1}")
    e(f"v_lshlrev_b32 v{vT2}, 4, v{vL}")
    e(f"s_lshl_b32 s{sT3}, s{sNS}, 7")
    e(f"v_and_b32 v{vT3}, 7, v{vL}")
    e(f"v_lshlrev_b32 v{vXs}, 8, v{vT3}")
    e(f"s_lshl_b32 s{sPT}, s{sMT}, 13")
    e(f"s_lshl_b32 s{sD2}, s{sW}, 11")
    e(f"s_add_u32 s{sPT}, s{sPT}, s{sD2}")
    e(f"s_mul_i32 s{sMa}, s{sMT}, {26 if opt.get('ch') else 24}")
    e(f"s_mul_i32 s{sMb}, s{sW}, {7 if opt.get('ch') else 6}")
    e(f"s_add_u32 s{sMa}, s{sMa}, s{sMb}")
    e(f"v_min_u32 v{vT4}, {6 if opt.get('ch') else 5}, v{vL}")
    e(f"v_add_u32 v{vT4}, s{sMa}, v{vT4}")
    e(f"v_lshrrev_b32 v{vPB}, 5, v{vT4}")
    e(f"v_and_b32 v{vT4}, 31, v{vT4}")
    e(f"v_lshlrev_b32 v{vT4}, 10, v{vT4}")
    e(f"v_lshl_add_u32 v{vT4}, v{vPB}, 17, v{vT4}")
    e(f"v_lshrrev_b32 v{vT1}, 2, v{vL}")
    e(f"v_lshlrev_b32 v{vD[0]}, 8, v{vT1}")
    e(f"v_and_b32 v{vT1}, 3, v{vL}")
    e(f"v_lshl_add_u32 v{vD[0]}, v{vT1}, 4, v{vD[0]}")
    for j in range(1, 4): e(f"v_add_u32 v{vD[j]}, {j*3056}, v{vD[0]}")
    e(f"s_lshl_b32 s{sT1}, s{sW}, 4")
    e(f"s_min_u32 s{sT1}, s{sT1}, 47")
    e(f"s_mul_i32 s{sDM0}, s{sT1}, 1040")
    e(f"s_lshl_b32 s{sDSO}, s{sT1}, 12")
    e("s_waitcnt lgkmcnt(0)")
    g.stamp("karg")
    PF = opt.get("pf", 15)
    if PF & 1: g.vmem(f"buffer_load_dword v{vPf}, v{vXs}, s[{sTAB}:{sTAB+3}], s{sPT} offen")
    if PF & 2: g.vmem(f"buffer_load_dword v{vPf}, v{vT4}, s[{sW1}:{sW1+3}], s{sT3} offen")
    CH = opt.get("ch", 0)
    if CH:
        e(f"v_mov_b32 v{vPB}, v{vT4}")
        e(f"s_mov_b32 s{sPB}, s{sT3}")
    for j in range(4):
        if j == 3: e("s_mov_b64 exec, 0xffff")
        g.vmem(f"buffer_load_dwordx4 v{vT2}, s[{sIDX}:{sIDX+3}], s{sT2} offen{off(j*1024)} lds", tag="idx")
    e("s_mov_b64 exec, -1")
    e(f"s_load_dwordx4 s[{sWWv}:{sWWv+3}], s[{sWW}:{sWW+1}], 0")
    e(f"s_load_dwordx2 s[{sWWv+4}:{sWWv+5}], s[{sWW}:{sWW+1}], 16")
    e(f"s_load_dword s{sWWv+6}, s[{sWW}:{sWW+1}], 24")
    e(f"s_load_dword s{sWWv+7}, s[{sBW}:{sBW+1}], 0")
    e(f"s_load_dword s{sWWv+8}, s[{sB2}:{sB2+1}], 0")
    e(f"v_and_b32 v{vG}, 48, v{vL}")
    e(f"v_lshlrev_b32 v{vW1[0]}, 9, v{vG}")
    e(f"v_and_b32 v{vT1}, 8, v{vL}")
    e(f"v_lshl_add_u32 v{vW1[0]}, v{vT1}, 7, v{vW1[0]}")
    e(f"v_lshl_add_u32 v{vW1[0]}, v{vT3}, 4, v{vW1[0]}")
    e(f"s_mul_i32 s{sT1}, s{sW}, {6*131072}")
    e(f"s_add_u32 s{sT1}, s{sT1}, s{sT3}")
    e(f"v_add_u32 v{vW1[0]}, s{sT1}, v{vW1[0]}")
    e(f"v_add_u32 v{vW1[1]}, 4096, v{vW1[0]}")
    e(f"v_and_b32 v{vG}, 32, v{vL}")
    P01 = []
    for q in range(4):
        for jj in (0, 2):
            for c in (0, 1):
                for j in (jj, jj + 1):
                    def th(q=q, j=j, c=c, jj=jj):
                        if jj == 0 and c == 0 and j == 0:
                            e(f"s_add_u32 s{sMa}, s{sDM0}, {EVEN_OFF + q*4160}")
                            e(f"s_add_u32 s{sMb}, s{sDM0}, {ODD_OFF + q*4160}")
                            e(f"s_add_u32 s{sD2}, s{sDSO}, {q*16384}")
                            e(f"s_add_u32 s{sD3}, s{sDSO}, {q*16384 + 64}")
                        if j == jj:
                            e(f"s_mov_b32 m0, s{sMb if c else sMa}")
                            e("s_nop 0")
                        g.vmem(f"buffer_load_dwordx4 v{vD[j]}, s[{sTAB}:{sTAB+3}], s{sD3 if c else sD2} offen{off(j*1040)} lds", tag="p01")
                    P01.append(th)
    NP1 = opt.get("np1", 4)
    R0E = opt.get("r0e", -1)
    for i, th in enumerate(P01[:NP1]):
        if i == R0E:
            for kd in range(NL): w1_load(0, kd)
        th()
    if R0E == NP1:
        for kd in range(NL): w1_load(0, kd)
    e(f"v_mov_b32 v{vSel}, 0x05040100")
    e(f"v_mov_b32 v{vT4}, 0x03020706")
    e(f"v_cmp_ne_u32 vcc, 0, v{vT1}")
    e(f"s_mov_b32 s{s65}, 65")
    e(f"s_cmp_lt_u32 s{sW}, 2")
    e(f"v_cndmask_b32 v{vSel}, v{vSel}, v{vT4}, vcc")
    e(f"s_cselect_b32 s{sT1}, {EVEN_OFF}, {ODD_OFF}")
    e(f"v_add_u32 v{vGx}, s{sT1}, v{vG}")
    if not CH:
        e(f"v_min_u32 v{vPB}, 25, v{vL}")
        e(f"v_lshlrev_b32 v{vPB}, 10, v{vPB}")
        e(f"s_mul_i32 s{sPB}, s{sMT}, 104")
        e(f"s_mul_i32 s{sT1}, s{sW}, 26")
        e(f"s_add_u32 s{sPB}, s{sPB}, s{sT1}")
        e(f"s_lshl_b32 s{sPB}, s{sPB}, 10")
        e(f"s_add_u32 s{sPB}, s{sPB}, s{sT3}")
    PE = opt.get("pe", 0)
    if PE & 8: g.vmem(f"buffer_load_dword v{vPf}, v{vPB}, s[{sW1}:{sW1+3}], s{sPB} offen")
    if PE & 4: g.vmem(f"buffer_load_dword v{vPf}, v{vXs}, s[{sTAB}:{sTAB+3}], s{sPT} offen offset:128")
    PF &= ~PE
    e(f"v_lshlrev_b32 v{vBW}, 1, v{vG}")
    e(f"v_add_u32 v{vBW}, s{sT3}, v{vBW}")
    if PE & 16: g.vmem(f"global_load_dword v{vPf}, v{vBW}, s[{sB1}:{sB1+1}]")
    if PE & 32: g.vmem(f"global_load_dword v{vPf}, v{vBW}, s[{sW2}:{sW2+1}]")
    e(f"s_and_b32 s{sT1}, s{sW}, 1")
    e(f"s_add_u32 s{sT1}, s{sT1}, 24")
    e(f"s_mul_i32 s{sXO}, s{sW}, 6")
    e(f"s_sub_u32 s{sXO}, s{sT1}, s{sXO}")
    e(f"s_lshl_b32 s{sT3}, s{sXO}, 2")
    e(f"s_lshl_b32 s{sXO}, s{sXO}, 17")
    e(f"s_lshr_b32 s{sT1}, s{sW}, 1")
    e(f"s_lshl_b32 s{sT1}, s{sT1}, 15")
    e(f"s_add_u32 s{sXO}, s{sXO}, s{sT1}")
    e(f"v_and_b32 v{vT4}, 31, v{vL}")
    e(f"v_mul_u32_u24 v{vT1}, 104, v{vT4}")
    e(f"s_mul_i32 s{sT1}, s{sW}, 24")
    e(f"s_add_u32 s{sT1}, s{sT1}, {IDX_OFF}")
    e(f"v_add_u32 v{vT1}, s{sT1}, v{vT1}")
    for a in range(4):
        e(f"s_add_u32 s{sT1}, s{sW}, {a+1}")
        e(f"s_and_b32 s{sT1}, s{sT1}, 3")
        e(f"s_mul_i32 s{sT2}, s{sT1}, 3328")
        e(f"v_add_u32 v{XR+a}, s{sT2}, v{vT1}")
        if a < 3:
            e(f"s_lshl_b32 s{sT1}, s{sT1}, 13")
            e(f"s_add_u32 s{sT1}, s{sT1}, {RED + a*32768}")
            e(f"v_add_u32 v{vRW[a]}, s{sT1}, v{vT2}")
    e(f"s_lshl_b32 s{sT1}, s{sW}, 13")
    e(f"s_add_u32 s{sT1}, s{sT1}, {RED}")
    e(f"v_add_u32 v{vRR0}, s{sT1}, v{vT2}")
    e(f"v_add_u32 v{vRR1}, 0x10000, v{vRR0}")
    for a in range(4): e(f"v_add_u32 v{W2P+a}, s{sT3}, v{XR+a}")
    e(f"v_add_u32 v{vWrO}, s{sDM0}, v{vT2}")
    e(f"v_add_u32 v{vWrE}, {EVEN_OFF}, v{vWrO}")
    e(f"s_lshl_b32 s{sT1}, s{sMT}, 7")
    e(f"s_lshl_b32 s{sT2}, s{sW}, 5")
    e(f"s_add_u32 s{sT1}, s{sT1}, s{sT2}")
    e(f"v_add_u32 v{vT4}, s{sT1}, v{vT4}")
    e(f"v_lshlrev_b32 v{vAt}, 3, v{vT4}")
    e(f"v_mov_b32 v{vZ0}, 0")
    e(f"v_mov_b32 v{vZ0+1}, 0")
    e(f"s_or_b32 s{sT1}, s{sNS}, s{sW}")
    e(f"s_cmp_eq_u32 s{sT1}, 0")
    e(f"s_cselect_b32 s{sRole}, 1, 0")
    e(f"s_cmp_eq_u32 s{sNS}, 0")
    e(f"s_cselect_b32 s{sWm}, -1, 0")
    g.stamp("iss")
    g.waitvm("idx")
    e("s_barrier")
    g.stamp("idx")
    for a in range(4):
        b = AD0 + 8 * a
        e(f"ds_read2_b64 {vr(b)}, v{XR+a} offset0:0 offset1:1")
        e(f"ds_read_b64 {vr(b+4,2)}, v{XR+a} offset:16")
        e(f"ds_read_b32 v{b+6}, v{W2P+a}")
    NP2 = opt.get("np2", 8)
    for th in P01[NP1:NP2]: th()
    g.waitl0()
    g.stamp("lidx")
    V = []
    for f in range(7):
        for a in range(4):
            V.append(lambda f=f, a=a: e(f"v_mad_u32_u24 v{AD(f,a)}, v{AD(f,a)}, s{s65}, v{vGx if f == 6 else vG}"))
        for a in range(4):
            V.append(lambda f=f, a=a: e(f"v_and_b32 v{AD(f,a)}, -16, v{AD(f,a)}"))
    R0P = opt.get("r0p", 12)
    M = P01[NP2:R0P] + [lambda kd=kd: w1_load(0, kd) for kd in range(NL if R0E < 0 else 0)] + P01[R0P:] + [lambda s=s, kd=kd: w1_load(s, kd) for s in (1, 2) for kd in range(NL)]
    per = opt.get("per", 4)
    vi = 0
    for th in M:
        th()
        for fn in V[vi:vi + per]: fn()
        vi += per
    for fn in V[vi:]: fn()
    if opt.get("xE"):
        for f in range(7):
            for a in range(4): e(f"v_lshlrev_b32 v{AD(f,a)}, {4 if opt['xE']==1 else 5}, v{vL}")
    for fn in xf_ops(0): fn()
    g.stamp("f0")
    g.waitvm("p01")
    e("s_barrier")
    g.stamp("p01")

    mf = []
    for s in range(22):
        for a in range(4):
            for kh in range(2):
                for t in range(2): mf.append((s, a, t, kh))
    for a in range(4):
        for t in ((1, 0) if a == 2 else (0, 1)):
            for s in range(22, 26):
                for kh in range(2): mf.append((s, a, t, kh))
    pre = [[] for _ in range(NK + 1)]
    post = [[] for _ in range(NK)]
    for a in range(4):
        for kh in range(2): e_read(0, a, kh)
    g.stamp("s0")
    BAR12 = opt.get("bar12", 4); EW = opt.get("ew", 8)
    for k, (s, a, t, kh) in enumerate(mf):
        if s == 0: pre[k].append(lambda s=s, a=a, kh=kh: g.waitl(("E", s, a, kh)))
        elif s < 22:
            pass
        elif k % 16 < 8 and (k % 16) % (EW // 2) == 0:
            pre[k].append(lambda k=k: g.waitl(("E", mf[k + EW // 2 - 1][0], mf[k][1], mf[k + EW // 2 - 1][3])))
    for k in range(16, KT, EW):
        m = mf[k + EW - 1]
        pre[k].append(lambda m=m: g.waitl(("E", m[0], m[1], m[3])))
    pre[K(7, 0)].append(lambda: e("s_barrier"))
    def bar12():
        g.waitvm("c2dma"); g.waitl(("tw", 2)); g.waitl(("E", 12, 3, 1)); e("s_barrier")
    pre[K(12, BAR12)].append(bar12)
    def bar18():
        g.waitl(("tw", 3)); e("s_barrier")
    pre[K(18, 1)].append(bar18)
    pre[K(21, 0)].append(lambda: e("s_barrier"))
    for s in range(1, 22):
        for a in range(4):
            for kh in range(2):
                pos = K(s - 1, 4 * a + 2 * kh + 1)
                if s == 13 and pos < K(12, BAR12): pos = K(12, BAR12)
                post[pos].append(lambda s=s, a=a, kh=kh: e_read(s, a, kh))
    for a in range(4):
        for i in range(8):
            post[KT + 16 * (a - 1) + 2 * i + (1 if a == 0 else 0)].append(lambda a=a, i=i: e_read(22 + (i >> 1), a, i & 1))
    FLEX = []
    for n in range(1, NS): FLEX.append((bw0[n], bw1[n], xf_ops(n)))
    NC2A = 9
    def t_load(p, c):
        if opt.get("xC"):
            g.tags[("t", p, c)] = 0; g.tags["c2dma"] = 0; return
        q, j = p >> 2, p & 3
        if c == 2: e(f"s_add_u32 s{sD2}, s{sDSO}, {q*16384 + 128}")
        if c == 2 and p >= NC2A:
            e(f"s_add_u32 m0, s{sDM0}, {EVEN_OFF + q*4160}")
            e("s_nop 0")
            g.vmem(f"buffer_load_dwordx4 v{vD[j]}, s[{sTAB}:{sTAB+3}], s{sD2} offen{off(j*1040)} lds", tag="c2dma")
        else:
            r = (C2A if c == 2 else C3A) + 4 * p
            g.vmem(f"buffer_load_dwordx4 {ar(r)}, v{vD[j]}, s[{sTAB}:{sTAB+3}], s{sD2} offen{off(j*1040 + (64 if c == 3 else 0))}", tag=("t", p, c))
    def t_write(p, c):
        g.waitvm(("t", p, c))
        if opt.get("xT"):
            g.ltags[("tw", c)] = g.lg; return
        r = (C2A if c == 2 else C3A) + 4 * p
        g.lds(f"ds_write_b128 v{vWrE if c == 2 else vWrO}, {ar(r)}{off(p*1040)}", tag=("tw", c))
    for n in range(3, NS):
        for kd in range(NL): post[rp[n][kd]].append(lambda n=n, kd=kd: w1_load(n, kd))
    tp = []
    for s in range(1, 11): tp += [K(s, 3), K(s, 11)] if s % 2 else [K(s, 10)]
    tp.append(K(11, 1))
    if opt.get("tl") == 2:
        tp = [K(2, 3), K(2, 11), K(3, 7), K(4, 3), K(4, 11), K(5, 7), K(6, 3), K(6, 9), K(6, 15), K(7, 7), K(8, 3), K(8, 11), K(9, 7), K(10, 3), K(10, 11), K(11, 3)]
    if opt.get("tl") == 1:
        tp = [K(3, 3), K(3, 11), K(4, 7), K(5, 1), K(5, 7), K(5, 13), K(6, 3), K(6, 9), K(6, 15), K(7, 5), K(7, 13), K(8, 5), K(8, 13), K(9, 7), K(10, 1), K(10, 11)]
    assert len(tp) == 16 and tp[NC2A - 1] < K(7, 0) <= tp[NC2A]
    TS = opt.get("ts", 0)
    for p in range(16):
        post[tp[p]].append(lambda p=p: t_load(p, 2))
        post[tp[p] + TS].append(lambda p=p: t_load(p, 3))
    if PF & 4: post[opt.get("pk4", 2)].append(lambda: g.vmem(f"buffer_load_dword v{vPf}, v{vXs}, s[{sTAB}:{sTAB+3}], s{sPT} offen offset:128"))
    if CH:
        for pos in (opt.get("c1", 3), opt.get("c2", 83), opt.get("c3", 179)):
            post[pos].append(lambda: (e(f"s_add_u32 s{sPB}, s{sPB}, 0x8000"), g.vmem(f"buffer_load_dword v{vPf}, v{vPB}, s[{sW1}:{sW1+3}], s{sPB} offen")))
    elif PF & 8: post[opt.get("pk8", 3)].append(lambda: g.vmem(f"buffer_load_dword v{vPf}, v{vPB}, s[{sW1}:{sW1+3}], s{sPB} offen"))
    wl = [(7, 4), (7, 12), (8, 4), (8, 12), (9, 4), (9, 12), (10, 4), (10, 12), (11, 4)]
    for p in range(NC2A): post[K(*wl[p])].append(lambda p=p: t_write(p, 2))
    wl = [(12, 7), (12, 11), (12, 15)] + [(s, i) for s in range(13, 17) for i in (3, 7, 11)] + [(17, 3)]
    for p in range(16): post[K(*wl[p])].append(lambda p=p: t_write(p, 3))
    def guard(fn):
        def w():
            a, b = g.vdone, g.ldone
            fn()
            g.vdone, g.ldone = a, b
        return w
    def claim():
        e(f"s_cmp_eq_u32 s{sRole}, 0")
        e("s_cbranch_scc1 L_NOC")
        e(f"s_lshl_b32 s{sT1}, s{sMT}, 2")
        e(f"v_mov_b32 v{vT2}, s{sT1}")
        e(f"v_mov_b32 v{vClaim}, 1")
        e("s_mov_b64 exec, 1")
        e(f"global_atomic_add v{vClaim}, v{vT2}, v{vClaim}, s[{sDBG}:{sDBG+1}] sc0 sc1")
        e("s_mov_b64 exec, -1")
        g.lab("L_NOC")
        g.mark("claim")
    post[K(0, 14)].append(claim)
    def swap():
        e(f"s_cmp_eq_u32 s{sRole}, 0")
        e("s_cbranch_scc1 L_NOW")
        g.waitvm("claim", force=True)
        e(f"v_readfirstlane_b32 s{sT1}, v{vClaim}")
        e(f"s_cmp_lg_u32 s{sT1}, 0")
        e(f"s_cselect_b32 s{sRole}, 0, 1")
        e("s_cbranch_scc1 L_NOW")
        e(f"s_lshl_b32 s{sT1}, s{sMT}, 10")
        e(f"v_lshlrev_b32 v{vT2}, 3, v{vL}")
        e(f"v_add_u32 v{vT2}, s{sT1}, v{vT2}")
        e(f"global_atomic_swap_x2 {vr(XR,2)}, v{vT2}, {vr(vZ0,2)}, s[{sWS}:{sWS+1}] sc0 sc1")
        e(f"global_atomic_swap_x2 {vr(XR+2,2)}, v{vT2}, {vr(vZ0,2)}, s[{sWS}:{sWS+1}] offset:512 sc0 sc1")
        g.lab("L_NOW")
        g.mark("swap")
    post[K(4, 14)].append(guard(swap))
    def flag():
        e(f"s_cmp_eq_u32 s{sRole}, 0")
        e("s_cbranch_scc1 L_NOF")
        g.waitvm("swap", force=True)
        e(f"s_lshl_b32 s{sT1}, s{sMT}, 2")
        e(f"v_mov_b32 v{vT2}, s{sT1}")
        e(f"v_mov_b32 v{vT3}, 1")
        e("s_mov_b64 exec, 1")
        e(f"global_store_dword v{vT2}, v{vT3}, s[{sDBG}:{sDBG+1}] offset:128 sc0 sc1")
        e("s_mov_b64 exec, -1")
        g.lab("L_NOF")
    post[K(9, 14)].append(guard(flag))
    for r in range(4):
        post[K(opt.get("b1s", 3) - 3, 4 + 2 * r)].append(lambda r=r: g.vmem(f"global_load_dwordx4 {vr(W2P+4*r)}, v{vBW}, s[{sB1}:{sB1+1}]{off(16*r)}", tag="b1"))
        post[K(20, 2 + 4 * r)].append(lambda r=r: g.vmem(f"global_load_dwordx4 {vr(W2P+4*r)}, v{vBW}, s[{sW2}:{sW2+1}]{off(16*r)}", tag="w2"))
    def xload():
        e(f"v_lshrrev_b32 v{vT2}, 3, v{vAt}")
        e(f"v_mul_u32_u24 v{vT2}, 26, v{vT2}")
        e(f"v_and_b32 v{vT2}, -4, v{vT2}")
        g.vmem(f"global_load_dwordx4 {vr(XR)}, v{vT2}, s[{sX_}:{sX_+1}]")
        g.vmem(f"global_load_dwordx3 {vr(XR+4,3)}, v{vT2}, s[{sX_}:{sX_+1}] offset:16", tag="x")
    post[K(19, 0)].append(xload)
    def rdflag():
        e(f"s_lshl_b32 s{sT1}, s{sMT}, 2")
        e(f"v_mov_b32 v{vT3}, s{sT1}")
        g.vmem(f"global_load_dword v{vFlag}, v{vT3}, s[{sDBG}:{sDBG+1}] offset:128 sc1", tag="flag")
    post[K(23, 3)].append(rdflag)
    def spread(ops, k0, k1):
        for i, fn in enumerate(ops): post[k0 + (i * (k1 - k0)) // len(ops)].append(fn)
    B1S = opt.get("b1s", 3)
    for q in range(4):
        ops = []
        t = q >> 1
        for r in range(8 * (q & 1), 8 * (q & 1) + 4):
            d = W2P + DI(t, r); h = OWN0 + 16 * t + r
            ops.append(lambda d=d: (g.waitvm("b1"), e(f"v_lshlrev_b32 v{vT1}, 16, v{d}")))
            ops.append(lambda d=d: e(f"v_and_b32 v{d}, 0xffff0000, v{d}"))
            ops.append(lambda h=h: e(f"v_add_f32 v{h}, v{h}, v{vT1}"))
            ops.append(lambda h=h, d=d: e(f"v_add_f32 v{h+4}, v{h+4}, v{d}"))
        FLEX.append((K(B1S + q, 1), K(B1S + q, 11), ops))
    XX = [XR + i for i in range(7)]
    ops = [lambda: g.waitvm("x"),
           lambda: e(f"v_and_b32 v{vXs}, 1, v{vL}"), lambda: e(f"v_lshlrev_b32 v{vXs}, 4, v{vXs}"),
           lambda: e(f"s_lshl_b32 s{sT1}, s{sWWv+7}, 16"), lambda: e(f"s_lshl_b32 s{sT2}, s{sWWv+8}, 16"),
           lambda: e(f"v_mov_b32 v{vWide}, s{sT1}"), lambda: e(f"v_add_f32 v{vWide}, s{sT2}, v{vWide}"),
           lambda: e(f"s_and_b32 s{sWWv+6}, s{sWWv+6}, 0xffff")]
    for i in range(6): ops.append(lambda i=i: e(f"v_alignbit_b32 v{XX[i]}, v{XX[i+1]}, v{XX[i]}, v{vXs}"))
    ops.append(lambda: e(f"v_bfe_u32 v{XX[6]}, v{XX[6]}, v{vXs}, 16"))
    for i in range(7): ops.append(lambda i=i: e(f"v_dot2_f32_bf16 v{vWide}, v{XX[i]}, s{sWWv+i}, v{vWide}"))
    FLEX.append((KT, KT + 20, ops))
    post[KT + 22].append(lambda: e(f"v_and_b32 v{vAcc}, s{sWm}, v{vWide}"))
    post[KT + 23].append(lambda: (e(f"v_mul_f32 v{vAcc}, 0.5, v{vAcc}"), e(f"v_mov_b32 v{vT4}, 0")))
    WS = opt.get("ws", 2)
    def CT(c): return (c >> 1, (c & 1) ^ (c >= 4))
    for c in range(6):
        a, t = CT(c)
        for i in range(4):
            if opt.get("xR", 0) & 1: g.ltags[("rw", c)] = 0; continue
            post[KT + 8 * c + 9 + WS * i].append(lambda a=a, t=t, i=i, c=c: g.lds(f"ds_write_b128 v{vRW[a]}, {ar(ACCB(a,t)+4*i)}{off((4*t+i)*1024)}", tag=("rw", c)))
    def rbar(c):
        def f():
            g.waitl(("rw", c))
            if not opt.get("xR", 0) & 2: e("s_barrier")
        return f
    def rread(c, k0, per=1):
        a, t = CT(c)
        for i in range(4):
            base, o = (vRR0, a * 32768 + (4*t+i) * 1024) if a < 2 else (vRR1, (4*t+i) * 1024)
            post[k0 + i // per].append(lambda i=i, base=base, o=o, t=t, c=c: g.lds(f"ds_read_b128 {vr(P[t]+4*i)}, v{base}{off(o)}", tag=("rr", c, i)))
    def radd(c, k0, k1):
        t = CT(c)[1]; ops = []
        for i in range(16):
            def f(i=i):
                if i % 8 == 0: g.waitl(("rr", c, i // 4 + 1))
                e(f"v_add_f32 v{OWN0+16*t+i}, v{OWN0+16*t+i}, v{P[t]+i}")
            ops.append(f)
        FLEX.append((k0, k1, ops))
    BD = opt.get("bd", 3)
    def BK(c): return KT + 8 * c + 9 + 3 * WS + BD
    pre[BK(1)].append(rbar(1)); rread(0, BK(1)); rread(1, BK(1) + 4); radd(0, BK(1) + 5, BK(1) + 10); radd(1, BK(1) + 9, BK(3))
    pre[BK(2)].append(rbar(2)); rread(2, BK(1) + 10); radd(2, BK(1) + 15, KT + 48)
    pre[BK(3)].append(rbar(3)); rread(3, BK(3), 2); radd(3, BK(3) + 3, BK(4))
    pre[BK(4)].append(rbar(4)); rread(4, BK(4), 2); radd(4, BK(4) + 3, KT + 56)
    pre[BK(5)].append(rbar(5)); rread(5, BK(5), 2); radd(5, BK(5) + 3, KT + 64)
    def fin(t):
        ops = []; h = OWN0 + 16 * t
        R = (0, 1, 2, 3, 8, 9, 10, 11)
        for r in R: ops.append(lambda r=r: e(f"v_cvt_pk_bf16_f32 v{h+r}, v{h+r}, v{h+r+4}"))
        for r in R: ops.append(lambda r=r: e(f"v_pk_max_i16 v{h+r}, v{h+r}, 0"))
        for r in R:
            A = vAcc if r & 1 else vT4
            ops.append(lambda r=r, A=A: e(f"v_dot2_f32_bf16 v{A}, v{h+r}, v{W2P + DI(t, r)}, v{A}"))
        return ops
    post[KT + 57].append(lambda: (g.waitvm("flag"), e(f"v_readfirstlane_b32 s{sT1}, v{vFlag}"), e(f"s_mov_b32 s{sT2}, 0x49000000"), e(f"s_mov_b32 s{sT3}, 0xc9000000")))
    def cost(line):
        w = line.split()
        if not w or line.endswith(":"): return 0
        op = w[0]
        if op == "s_nop": return 4 * (int(w[1]) + 1)
        if op.startswith("ds_write_b128"): return opt.get("cw", 16)
        if op.startswith("v_dot2"): return 12
        if op.startswith("v_permlane"): return opt.get("cs", 8)
        if op.startswith("buffer_load") or op.startswith("global_load"): return opt.get("cv", 4)
        if op.startswith("v_mfma"): return 0
        return 4
    import copy
    def measure():
        sv = (len(g.o), g.vm, g.lg, dict(g.tags), dict(g.ltags), g.vdone, g.ldone)
        c = []
        for k in range(NK):
            n0 = len(g.o)
            for fn in post[k]: fn()
            for fn in pre[k + 1]: fn()
            c.append(sum(cost(x) for x in g.o[n0:]))
        del g.o[sv[0]:]
        _, g.vm, g.lg, g.tags, g.ltags, g.vdone, g.ldone = sv
        return c
    def opcost(fn):
        sv = (len(g.o), g.vm, g.lg, dict(g.tags), dict(g.ltags), g.vdone, g.ldone)
        g.vdone = 10**9; g.ldone = 10**9
        class D(dict):
            def __missing__(s, k): return 0
        g.tags = D(); g.ltags = D()
        fn()
        c = sum(cost(x) for x in g.o[sv[0]:])
        del g.o[sv[0]:]
        _, g.vm, g.lg, g.tags, g.ltags, g.vdone, g.ldone = sv
        return c
    load = measure()
    for k0, k1, ops in sorted(FLEX, key=lambda x: (x[1] - x[0]) / len(x[2])):
        cs = [opcost(fn) for fn in ops]
        for lvl in range(4, 200, 2):
            k = k0; asg = []; cur = load[k]
            for c_ in cs:
                while k < k1 and cur + c_ > lvl:
                    k += 1; cur = load[k] if k < k1 else 0
                if k >= k1: break
                asg.append(k); cur += c_
            if len(asg) == len(cs): break
        for fn, k, c_ in zip(ops, asg, cs):
            post[k].append(fn); load[k] += c_
    load = measure()
    if opt.get("rep"):
        for s_ in range(NS): print(s_, load[16*s_:16*s_+16], sum(max(32, 8 + x) for x in load[16*s_:16*s_+16]))
    for k, (s, a, t, kh) in enumerate(mf):
        for fn in pre[k]: fn()
        c = "0" if (s == 0 and kh == 0) else ACC(a, t)
        rd = set(range(F(s, 2*t+kh), F(s, 2*t+kh) + 4)) | (set(range(OWN0 + 16*t, OWN0 + 16*t + 16)) if a == 3 else set())
        for d in (1, 2):
            w = g.o[-d].replace(",", " ").split()
            if w[0].startswith("v_") and not w[0].startswith("v_mfma") and w[1][0] == "v" and w[1][1:].isdigit() and int(w[1][1:]) in rd:
                e(f"s_nop {2 - d}"); print("hazard nop at", k); break
        e(f"v_mfma_f32_32x32x16_bf16 {ACC(a,t)}, {vr(F(s, 2*t+kh))}, {ar(ereg(s, a, kh))}, {c}")
        n0 = len(g.o)
        for fn in post[k]: fn()
        if k % 16 == 15: g.stamp(f"s{k//16+1}")
    g.waitvm("w2")
    for fn in fin(0): fn()
    for fn in fin(1): fn()
    e(f"s_cmp_eq_u32 s{sT1}, 0")
    e("s_nop 1")
    e(f"v_add_f32 v{vT1}, v{vAcc}, v{vT4}")
    e(f"v_add_f32 v{vT2}, v{vAcc}, v{vT4}")
    e("s_nop 1")
    e(f"v_permlane32_swap_b32 v{vT1}, v{vT2}")
    e(f"v_add_f32 v{vT1}, v{vT1}, v{vT2}")
    e(f"v_min_f32 v{vT1}, s{sT2}, v{vT1}")
    e(f"v_max_f32 v{vT1}, s{sT3}, v{vT1}")
    e(f"v_floor_f32 v{vT2}, v{vT1}")
    e(f"v_sub_f32 v{vT3}, v{vT1}, v{vT2}")
    e(f"v_cvt_i32_f32 v{T0+1}, v{vT2}")
    e(f"v_mul_f32 v{vT3}, 0x4f800000, v{vT3}")
    e(f"v_add_u32 v{T0+1}, 0x1000000, v{T0+1}")
    e(f"v_cvt_u32_f32 v{T0}, v{vT3}")
    g.stamp("red")
    e("s_cbranch_scc1 L_SLOW")
    g.lab("L_GO")
    e("s_mov_b32 exec_lo, -1")
    e("s_mov_b32 exec_hi, 0")
    e(f"global_atomic_add_x2 {vr(T0+2,2)}, v{vAt}, {vr(T0,2)}, s[{sWS}:{sWS+1}] sc0 sc1")
    e(f"v_lshrrev_b32 v{vAt}, 2, v{vAt}")
    e("s_waitcnt vmcnt(0)")
    g.stamp("atom")
    e(f"v_add_co_u32 v{T0}, vcc, v{T0}, v{T0+2}")
    e(f"v_add_u32 v{vT1}, 0x800000, v{T0+3}")
    e(f"v_lshrrev_b32 v{vT1}, 24, v{vT1}")
    e(f"v_addc_co_u32 v{T0+1}, vcc, v{T0+1}, v{T0+3}, vcc")
    e(f"v_cmp_eq_u32 vcc, 7, v{vT1}")
    e(f"v_cvt_f32_u32 v{T0}, v{T0}")
    e(f"v_subrev_u32 v{T0+1}, 0x8000000, v{T0+1}")
    e(f"v_cvt_f32_i32 v{T0+1}, v{T0+1}")
    e("s_and_b64 exec, exec, vcc")
    e("s_cbranch_execz L_FIN")
    e(f"v_fmac_f32 v{T0+1}, 0x2f800000, v{T0}")
    e(f"v_mul_f32 v{T0+1}, 0xbfb8aa3b, v{T0+1}")
    e(f"v_exp_f32 v{T0+1}, v{T0+1}")
    e("s_nop 0")
    e(f"v_add_f32 v{T0+1}, 1.0, v{T0+1}")
    e(f"v_rcp_f32 v{T0+1}, v{T0+1}")
    e("s_nop 0")
    e(f"v_cvt_pk_bf16_f32 v{T0+1}, v{T0+1}, v{T0+1}")
    e(f"global_store_short v{vAt}, v{T0+1}, s[{sOUT}:{sOUT+1}]")
    g.lab("L_FIN")
    if opt.get("stamp"):
        e("s_mov_b64 exec, -1")
        e(f"s_memrealtime s[{ST0+14}:{ST0+15}]")
        e("s_waitcnt lgkmcnt(0)")
        e(f"s_cmp_lg_u32 s{sW}, 0")
        e("s_cbranch_scc1 L_END")
        e("s_mov_b64 exec, 1")
        e("s_lshl_b32 s3, s2, 6")
        e("s_add_u32 s3, s3, 0x200000")
        e("v_mov_b32 v2, s3")
        for i in range(16): e(f"v_mov_b32 v{4+i}, s{ST0+i}")
        for i in range(4): e(f"global_store_dwordx4 v2, v[{4+4*i}:{7+4*i}], s[{sWS}:{sWS+1}] offset:{16*i}")
    g.lab("L_END")
    e("s_endpgm")
    g.lab("L_SLOW")
    e(f"s_lshl_b32 s{sT1}, s{sMT}, 2")
    e(f"v_mov_b32 v{vT2}, s{sT1}")
    e(f"v_mov_b32 v{vClaim}, 1")
    e("s_mov_b64 exec, 1")
    e(f"global_atomic_add v{vClaim}, v{vT2}, v{vClaim}, s[{sDBG}:{sDBG+1}] sc0 sc1")
    e("s_waitcnt vmcnt(0)")
    e(f"v_readfirstlane_b32 s{sT1}, v{vClaim}")
    e(f"s_cmp_lg_u32 s{sT1}, 0")
    e("s_cbranch_scc1 L_SPIN")
    e("s_mov_b64 exec, -1")
    e(f"s_lshl_b32 s{sT1}, s{sMT}, 10")
    e(f"v_lshlrev_b32 v{vT3}, 3, v{vL}")
    e(f"v_add_u32 v{vT3}, s{sT1}, v{vT3}")
    e(f"global_atomic_swap_x2 {vr(XR,2)}, v{vT3}, {vr(vZ0,2)}, s[{sWS}:{sWS+1}] sc0 sc1")
    e(f"global_atomic_swap_x2 {vr(XR+2,2)}, v{vT3}, {vr(vZ0,2)}, s[{sWS}:{sWS+1}] offset:512 sc0 sc1")
    e(f"v_mov_b32 v{vT3}, 1")
    e("s_waitcnt vmcnt(0)")
    e("s_mov_b64 exec, 1")
    e(f"global_store_dword v{vT2}, v{vT3}, s[{sDBG}:{sDBG+1}] offset:128 sc0 sc1")
    e("s_branch L_GO")
    g.lab("L_SPIN")
    e(f"global_atomic_or v{vClaim}, v{vT2}, v{vZ0}, s[{sDBG}:{sDBG+1}] offset:128 sc0 sc1")
    e("s_waitcnt vmcnt(0)")
    e(f"v_readfirstlane_b32 s{sT1}, v{vClaim}")
    e(f"s_cmp_lg_u32 s{sT1}, 0")
    e("s_cbranch_scc1 L_GO")
    e("s_sleep 8")
    e("s_branch L_SPIN")

    ref = open(REF).read().split("\n")
    hdr = []
    for ln in ref:
        if ln.startswith("; @launch"):
            hdr.append(f"; @launch grid=(256,1,1) block=(256,1,1) lds={LDS_BYTES}"); break
        hdr.append(ln)
    hdr += ['.amdgcn_target "amdgcn-amd-amdhsa--gfx950"', ".text", f".globl {KN}", ".p2align 8", f".type {KN},@function", f"{KN}:"]
    ftr = ['.section .rodata,"a"', ".p2align 6", f".amdhsa_kernel {KN}",
           "  .amdhsa_next_free_vgpr 512", "  .amdhsa_next_free_sgpr 102", "  .amdhsa_accum_offset 256",
           "  .amdhsa_group_segment_fixed_size 0", "  .amdhsa_kernarg_size 96", "  .amdhsa_user_sgpr_count 2",
           "  .amdhsa_user_sgpr_kernarg_segment_ptr 1", "  .amdhsa_system_sgpr_workgroup_id_x 1", ".end_amdhsa_kernel", ""]
    return "\n".join(hdr + g.o + ftr)

if __name__ == "__main__":
    opt = {}
    for a in sys.argv[2:]:
        k, v = a.split("="); opt[k] = v.split(",") if k == "stamp" else int(v)
    open(sys.argv[1], "w").write(gen(opt))
```
